```python
import torch

def _softmax(x, axis=-1):
    return torch.softmax(x, dim=axis)
def _gelu(x):
    return torch.nn.functional.gelu(x, approximate="tanh")
def _silu(x):
    return torch.nn.functional.silu(x)
def _sigmoid(x):
    return torch.sigmoid(x)
def _layernorm(x, axis=-1, eps=1e-5):
    m = x.mean(dim=axis, keepdim=True)
    v = x.var(dim=axis, keepdim=True, unbiased=False)
    return (x - m) / torch.sqrt(v + eps)
def _scatter_add(tgt, idx, src, axis=0):
    return tgt.clone().index_add_(axis, idx, src)
def _segment_sum(src, seg, n):
    out = torch.zeros((n,) + src.shape[1:], dtype=src.dtype)
    return out.index_add_(0, seg, src)
def _pad(x, pw):
    flat = tuple(v for pair in reversed(pw) for v in pair)
    return torch.nn.functional.pad(x, flat)

kernel_name = 'parallel_sum__softmax_full_mha__moe_arch_mod__prompt'

def setup_inputs():

    _w = (lambda a: (lambda t: t.to(torch.bfloat16) if t.is_floating_point() else t)(torch.as_tensor(a)))
    def _A_setup():
        B, S, D = 1, 2048, 640
        return {
            "x": _w((lambda *s: torch.randn(*s, dtype=torch.bfloat16) * 0.05)(B, S, D)),
            "wqkv": _w((lambda *s: torch.randn(*s, dtype=torch.bfloat16) * 0.1)(D, 3 * D)),
            "wo": _w((lambda *s: torch.randn(*s, dtype=torch.bfloat16) * 0.05)(D, D)),
        }
    _A_in = _A_setup()

    def _B_setup():
        B, S, D, F, C = 1, 2048, 640, 1728, 8
        return {
            "x": _w((lambda *s: torch.randn(*s, dtype=torch.bfloat16) * 0.05)(B, S, D)),
            "w_r": _w((lambda *s: torch.randn(*s, dtype=torch.bfloat16) * 1.6)(D)),
            "w_gate": _w((lambda *s: torch.randn(*s, dtype=torch.bfloat16) * 0.1)(D, F)),
            "w_up": _w((lambda *s: torch.randn(*s, dtype=torch.bfloat16) * 0.1)(D, F)),
            "w_down": _w((lambda *s: torch.randn(*s, dtype=torch.bfloat16) * 0.1)(F, D)),
        }
    _B_in = _B_setup()

    return {
        "A_x": _A_in["x"],
        "A_wqkv": _A_in["wqkv"],
        "A_wo": _A_in["wo"],
        "B_x": _B_in["x"],
        "B_w_r": _B_in["w_r"],
        "B_w_gate": _B_in["w_gate"],
        "B_w_up": _B_in["w_up"],
        "B_w_down": _B_in["w_down"],
    }

def reference(A_x, A_wqkv, A_wo, B_x, B_w_r, B_w_gate, B_w_up, B_w_down):
    def _A_ref(x, wqkv, wo):
        B, S, D = x.shape
        H = 32; Dh = D // H
        qkv = (lambda x, *d: x.permute(*d))((x @ wqkv).reshape(B, S, 3, H, Dh), 2, 0, 3, 1, 4)
        q, k, v = qkv[0], qkv[1], qkv[2]
        scale = Dh ** -0.5
        scores = torch.einsum("bhqd,bhkd->bhqk", q, k) * scale
        p = _softmax(scores, axis=-1)
        o = torch.einsum("bhqk,bhkd->bhqd", p, v)
        return (lambda x, *d: x.permute(*d))(o, 0, 2, 1, 3).reshape(B, S, D) @ wo

    def _B_ref(x, w_r, w_gate, w_up, w_down):
        B, S, D = x.shape
        C = 8
        r = x @ w_r
        idx = torch.argsort(-r, axis=-1)[:, :C]
        idx_e = (lambda x, n, axis: torch.repeat_interleave(x, n, dim=axis))(idx.reshape(B, C, 1), D, axis=2)
        x_sel = (lambda x, i, axis: torch.take_along_dim(x, i, dim=axis))(x, idx_e, axis=1)
        g = _silu(x_sel @ w_gate)
        u = x_sel @ w_up
        y = (g * u) @ w_down
        r_sel = _sigmoid((lambda x, i, axis: torch.take_along_dim(x, i, dim=axis))(r, idx, axis=1))
        y = y * r_sel.reshape(B, C, 1)
        b_off = (torch.arange(B) * S).reshape(B, 1)
        flat_idx = (idx + b_off).reshape(B * C)
        zero = (x * 0.0).reshape(B * S, D)
        upd = _scatter_add(zero, flat_idx, y.reshape(B * C, D), axis=0)
        return x + upd.reshape(B, S, D)

    x = A_x
    xn = _layernorm(x, axis=-1)
    return x + _A_ref(xn, A_wqkv, A_wo) + _B_ref(xn, B_w_r, B_w_gate, B_w_up, B_w_down)
```

```python
class Asm:
    def __init__(self):
        self.lines = []
        self.uid = 0
    def __call__(self, s=""):
        for ln in s.split("\n"):
            ln = ln.strip()
            if not ln: continue
            if ln.endswith(":") or ln.startswith("."):
                self.lines.append(ln)
            else:
                self.lines.append("    " + ln)
    def c(self, s):
        self.lines.append("    ; " + s)
    def label(self, base):
        self.uid += 1
        return f"L_{base}_{self.uid}"
    def text(self):
        return "\n".join(self.lines) + "\n"

def V(a, n=1):
    return f"v{a}" if n == 1 else f"v[{a}:{a+n-1}]"
def S(a, n=1):
    return f"s{a}" if n == 1 else f"s[{a}:{a+n-1}]"
def A(a, n=1):
    return f"a{a}" if n == 1 else f"a[{a}:{a+n-1}]"

class Regs:
    def __init__(self, start, limit):
        self.n = start; self.limit = limit; self.hi = start
    def alloc(self, cnt=1, align=1):
        if cnt >= 2 and align == 1: align = 2
        self.n = (self.n + align - 1) // align * align
        r = self.n; self.n += cnt
        assert self.n <= self.limit, f"out of registers ({self.n} > {self.limit})"
        self.hi = max(self.hi, self.n)
        return r
    def mark(self): return self.n
    def reset(self, m): self.n = m

def kernel_header(a, name):
    a(f".globl {name}")
    a(".p2align 8")
    a(f".type {name},@function")
    a(f"{name}:")

def kernel_desc(name, nvgpr, nsgpr=96, accum=None):
    accum = accum if accum is not None else (nvgpr + 3) // 4 * 4
    return f""".p2align 6
.amdhsa_kernel {name}
  .amdhsa_next_free_vgpr {nvgpr}
  .amdhsa_next_free_sgpr {nsgpr}
  .amdhsa_accum_offset {accum}
  .amdhsa_group_segment_fixed_size 0
  .amdhsa_kernarg_size 88
  .amdhsa_user_sgpr_count 2
  .amdhsa_user_sgpr_kernarg_segment_ptr 1
  .amdhsa_system_sgpr_workgroup_id_x 1
  .amdhsa_float_denorm_mode_32 3
.end_amdhsa_kernel
"""

def srd(a, s, base, nbytes, off=0):
    if off:
        a(f"s_add_u32 s{s}, s{base}, {off}")
        a(f"s_addc_u32 s{s+1}, s{base+1}, 0")
    else:
        a(f"s_mov_b32 s{s}, s{base}")
        a(f"s_mov_b32 s{s+1}, s{base+1}")
    a(f"s_mov_b32 s{s+2}, {nbytes}")
    a(f"s_mov_b32 s{s+3}, 0x20000")
```

```python
from asmlib import *
from layout import *

K1_LDS = 131072
NST = 10

def bf16_round(a, dst, src, tmp=None):
    a(f"v_cvt_pk_bf16_f32 {V(dst)}, {V(src)}, {V(src)}")
    a(f"v_and_b32 {V(dst)}, 0xffff0000, {V(dst)}")

def finalize_stats(a, vsum, vsq, vmean, vrs, t0, t1):
    inv = f32bits(1.0 / D)
    a(f"v_mul_f32 {V(t0)}, {hex(inv)}, {V(vsum)}")
    a(f"v_mul_f32 {V(t1)}, {hex(inv)}, {V(vsq)}")
    a(f"v_fma_f32 {V(t1)}, -{V(t0)}, {V(t0)}, {V(t1)}")
    a(f"v_max_f32 {V(t1)}, 0, {V(t1)}")
    bf16_round(a, vmean, t0)
    bf16_round(a, t1, t1)
    a(f"v_add_f32 {V(t1)}, {hex(f32bits(1e-5))}, {V(t1)}")
    bf16_round(a, t1, t1)
    a(f"v_sqrt_f32 {V(t1)}, {V(t1)}")
    a("s_nop 0")
    bf16_round(a, t1, t1)
    a(f"v_rcp_f32 {V(vrs)}, {V(t1)}")
    a("s_nop 0")

def half_sum(a, v, t):
    a(f"v_mov_b32 {V(t)}, {V(v)}")
    a("s_nop 1")
    a(f"v_permlane32_swap_b32 {V(t)}, {V(v)}")
    a("s_nop 1")
    a(f"v_add_f32 {V(v)}, {V(t)}, {V(v)}")

def top8_rounds(a, vk0, vk1, vt, sout, st, uniq):
    for rnd in range(8):
        a(f"v_max_u32 {V(vt)}, {V(vk0)}, {V(vk1)}")
        for sh in (8, 4, 2, 1):
            a("s_nop 1")
            a(f"v_max_u32_dpp {V(vt)}, {V(vt)}, {V(vt)} row_ror:{sh} row_mask:0xf bank_mask:0xf")
        a("s_nop 0")
        for i in range(4):
            a(f"v_readlane_b32 s{st+i}, {V(vt)}, {16*i}")
        a(f"s_max_u32 s{st}, s{st}, s{st+1}")
        a(f"s_max_u32 s{st+2}, s{st+2}, s{st+3}")
        a(f"s_max_u32 s{sout+rnd}, s{st}, s{st+2}")
        if rnd < 7:
            a(f"v_cmp_ne_u32 vcc, s{sout+rnd}, {V(vk0)}")
            a(f"v_cmp_ne_u32 s[{st}:{st+1}], s{sout+rnd}, {V(vk1)}")
            a("s_nop 1")
            a(f"v_cndmask_b32 {V(vk0)}, 0, {V(vk0)}, vcc")
            a(f"v_cndmask_b32 {V(vk1)}, 0, {V(vk1)}, s[{st}:{st+1}]")

def gen_k1(a):
    name = "qkv_kernel"
    kernel_header(a, name)
    sX, sW, sWS, sWR = 4, 6, 8, 10
    sWave, sRT, sCT, sPhi, sT0, sT1, sT2 = 12, 13, 14, 15, 16, 17, 18
    rX, rW, rO = 20, 24, 28
    sSlot, sCnt, sOnes, sQS, sBA, sBB = 32, 33, 34, 35, 36, 37
    sMx, sMw, sSx, sSw = 38, 39, 40, 41
    vL = 1
    a("s_cmp_ge_u32 s2, 256")
    a("s_cbranch_scc1 L1_end")
    a(f"s_load_dwordx4 s[{sX}:{sX+3}], s[0:1], 0")
    a(f"s_load_dwordx2 s[{sWS}:{sWS+1}], s[0:1], 80")
    a(f"s_load_dwordx2 s[{sWR}:{sWR+1}], s[0:1], 32")
    a(f"v_lshrrev_b32 v2, 6, v0")
    a(f"v_and_b32 {V(vL)}, 63, v0")
    a(f"v_readfirstlane_b32 s{sWave}, v2")
    a(f"s_lshr_b32 s{sT0}, s2, 3")
    a(f"s_and_b32 s{sT1}, s{sT0}, 3")
    a(f"s_lshr_b32 s{sT0}, s{sT0}, 2")
    a(f"s_bfe_u32 s{sRT}, s2, 0x20001")
    a(f"s_lshl_b32 s{sRT}, s{sRT}, 2")
    a(f"s_add_u32 s{sRT}, s{sRT}, s{sT1}")
    a(f"s_and_b32 s{sCT}, s2, 1")
    a(f"s_lshl_b32 s{sCT}, s{sCT}, 3")
    a(f"s_add_u32 s{sCT}, s{sCT}, s{sT0}")
    a(f"s_mul_i32 s{sT1}, s{sT1}, 5")
    a(f"s_lshr_b32 s{sT1}, s{sT1}, 1")
    a(f"s_add_u32 s{sPhi}, s{sT0}, s{sT1}")
    a(f"s_sub_u32 s{sT0}, s{sPhi}, 10")
    a(f"s_cmp_ge_u32 s{sPhi}, 10")
    a(f"s_cselect_b32 s{sPhi}, s{sT0}, s{sPhi}")
    a(f"s_mov_b32 s{sOnes}, 0x3f803f80")
    a("s_waitcnt lgkmcnt(0)")
    srd(a, rX, sX, X_BYTES)
    srd(a, rW, sW, WQKV_BYTES)
    srd(a, rO, sWS, WS_END)
    a(f"s_cmp_eq_u32 s{sCT}, 15")
    a("s_cbranch_scc1 L1_router")
    a(f"s_cmp_lt_u32 s{sWave}, 4")
    a("s_cbranch_scc1 L1_cons")
    a.c("loader waves")
    vX, vWd = 4, 8
    a(f"s_sub_u32 s{sT0}, s{sWave}, 4")
    a(f"s_lshl_b32 s{sMx}, s{sT0}, 12")
    a(f"s_lshl_b32 s{sT1}, s{sRT}, 2")
    a(f"s_add_u32 s{sT1}, s{sT1}, s{sT0}")
    a(f"s_mul_i32 s{sT1}, s{sT1}, {32*ROWB}")
    a(f"v_lshrrev_b32 v2, 3, {V(vL)}")
    a(f"v_mul_u32_u24 v2, {ROWB}, v2")
    a(f"v_lshrrev_b32 v3, 4, {V(vL)}")
    a(f"v_and_b32 v12, 7, {V(vL)}")
    a(f"v_xor_b32 v12, v12, v3")
    a(f"v_lshlrev_b32 v12, 4, v12")
    a(f"v_add3_u32 {V(vX)}, v2, v12, s{sT1}")
    a(f"v_xor_b32 {V(vX+1)}, 64, {V(vX)}")
    a(f"v_add_u32 {V(vX+2)}, {2*(8*ROWB-1024)}, {V(vX)}")
    a(f"v_add_u32 {V(vX+1)}, {8*ROWB-1024}, {V(vX+1)}")
    a(f"v_add_u32 {V(vX+3)}, {2*(8*ROWB-1024)}, {V(vX+1)}")
    a(f"s_mul_i32 s{sT1}, s{sT0}, {16*WQKV_ROWB}")
    a(f"s_lshl_b32 s{sT2}, s{sCT}, 8")
    a(f"s_add_u32 s{sT1}, s{sT1}, s{sT2}")
    a(f"v_mul_u32_u24 v2, {WQKV_ROWB}, v3")
    a(f"v_lshlrev_b32 v3, 2, v3")
    a(f"v_and_b32 v12, 15, {V(vL)}")
    a(f"v_xor_b32 v12, v12, v3")
    a(f"v_lshlrev_b32 v12, 4, v12")
    a(f"v_add3_u32 {V(vWd)}, v2, v12, s{sT1}")
    for q in range(1, 4):
        a(f"v_add_u32 {V(vWd+q)}, {q*(4*WQKV_ROWB-1024)}, {V(vWd)}")
    def issue():
        a(f"s_lshl_b32 s{sSx}, s{sPhi}, 7")
        a(f"s_mul_i32 s{sSw}, s{sPhi}, {64*WQKV_ROWB}")
        a(f"s_mov_b32 m0, s{sMx}")
        a(f"s_add_u32 s{sMw}, s{sMx}, 16384")
        for q in range(4):
            a(f"buffer_load_dwordx4 {V(vX+q)}, s[{rX}:{rX+3}], s{sSx} offen offset:{q*1024} lds")
        a(f"s_mov_b32 m0, s{sMw}")
        a(f"s_add_u32 s{sPhi}, s{sPhi}, 1")
        for q in range(4):
            a(f"buffer_load_dwordx4 {V(vWd+q)}, s[{rW}:{rW+3}], s{sSw} offen offset:{q*1024} lds")
        a(f"s_cmp_eq_u32 s{sPhi}, {NST}")
        a(f"s_cselect_b32 s{sPhi}, 0, s{sPhi}")
        a(f"s_add_u32 s{sMx}, s{sMx}, 32768")
        a(f"s_and_b32 s{sMx}, s{sMx}, 0x1ffff")
    a(f"s_mov_b32 s{sCnt}, 3")
    a("L1_ld_pro:")
    issue()
    a(f"s_sub_u32 s{sCnt}, s{sCnt}, 1")
    a(f"s_cmp_lg_u32 s{sCnt}, 0")
    a("s_cbranch_scc1 L1_ld_pro")
    a(f"s_mov_b32 s{sCnt}, {NST-3}")
    a("L1_ld_loop:")
    a("s_waitcnt vmcnt(16)")
    a("s_barrier")
    issue()
    a(f"s_sub_u32 s{sCnt}, s{sCnt}, 1")
    a(f"s_cmp_lg_u32 s{sCnt}, 0")
    a("s_cbranch_scc1 L1_ld_loop")
    for n in (16, 8, 0):
        a(f"s_waitcnt vmcnt({n})")
        a("s_barrier")
    a("s_endpgm")
    a("L1_cons:")
    R = Regs(2, 256)
    t = [R.alloc() for _ in range(6)]
    vTok = R.alloc()
    xb = [[R.alloc() for s in range(4)] for xt in range(2)]
    wb = [R.alloc() for wt in range(2)]
    xa = [[R.alloc() for s in range(4)] for xt in range(2)]
    wa = [R.alloc() for wt in range(2)]
    vS, vQ, vC = R.alloc(), R.alloc(), R.alloc()
    oaddr = [[R.alloc() for q in range(4)] for wt in range(2)]
    fx = [[R.alloc(4, 4) for xt in range(2)] for st in range(2)]
    fw = [[R.alloc(4, 4) for wt in range(2)] for st in range(2)]
    acc = [[R.alloc(16, 4) for wt in range(2)] for xt in range(2)]
    ep = R.alloc(40, 4)
    sWi, sWj = 42, 43
    a(f"s_lshr_b32 s{sWi}, s{sWave}, 1")
    a(f"s_and_b32 s{sWj}, s{sWave}, 1")
    a(f"s_lshl_b32 s{sT0}, s{sRT}, 2")
    a(f"s_lshl_b32 s{sT1}, s{sWi}, 1")
    a(f"s_add_u32 s{sT0}, s{sT0}, s{sT1}")
    a(f"s_add_u32 s{sBA}, s{sT0}, s{sWj}")
    a(f"s_xor_b32 s{sBB}, s{sBA}, 1")
    for xt in range(2):
        for wt in range(2):
            for r in range(16):
                a(f"v_mov_b32 {V(acc[xt][wt]+r)}, 0")
    for r in (vS, vQ, vC):
        a(f"v_mov_b32 {V(r)}, 0")
    vH = t[0]
    a(f"v_lshrrev_b32 {V(vH)}, 5, {V(vL)}")
    a(f"v_bfe_u32 {V(t[1])}, {V(vL)}, 2, 2")
    a(f"v_bfe_u32 {V(t[2])}, {V(vL)}, 4, 1")
    a(f"v_bfe_u32 {V(t[3])}, {V(vL)}, 1, 1")
    a(f"v_lshl_add_u32 {V(t[2])}, {V(t[2])}, 1, {V(t[3])}")
    a(f"s_lshl_b32 s{sT0}, s{sWj}, 1")
    a(f"s_add_u32 s{sT0}, s{sT0}, s{sWi}")
    a(f"v_xor_b32 {V(t[3])}, s{sT0}, {V(t[1])}")
    a(f"v_lshl_add_u32 {V(t[2])}, {V(t[3])}, 2, {V(t[2])}")
    a(f"v_lshl_add_u32 {V(t[3])}, {V(vH)}, 3, {V(t[1])}")
    a(f"v_lshlrev_b32 {V(t[3])}, 8, {V(t[3])}")
    a(f"v_lshl_add_u32 {V(t[3])}, {V(t[2])}, 4, {V(t[3])}")
    a(f"v_and_b32 {V(t[2])}, 1, {V(vL)}")
    a(f"v_lshl_add_u32 {V(t[3])}, {V(t[2])}, 3, {V(t[3])}")
    a(f"v_add_u32 {V(wb[0])}, 16384, {V(t[3])}")
    a(f"v_xor_b32 {V(wb[1])}, 64, {V(wb[0])}")
    a(f"v_and_b32 {V(vTok)}, 31, {V(vL)}")
    a(f"s_cmp_ge_u32 s{sCT}, 10")
    a("s_cbranch_scc1 L1_consV")

    def xaddrs():
        a(f"s_lshl_b32 s{sT0}, s{sWi}, 13")
        a(f"s_lshl_b32 s{sT1}, s{sWj}, 12")
        a(f"s_add_u32 s{sT0}, s{sT0}, s{sT1}")
        a(f"v_lshlrev_b32 {V(t[1])}, 7, {V(vTok)}")
        a(f"v_add_u32 {V(t[1])}, s{sT0}, {V(t[1])}")
        a(f"v_bfe_u32 {V(t[2])}, {V(vTok)}, 1, 3")
        a(f"v_xor_b32 {V(t[2])}, {V(t[2])}, {V(vH)}")
        a(f"v_lshl_add_u32 {V(xb[0][0])}, {V(t[2])}, 4, {V(t[1])}")
        for s in range(1, 4):
            a(f"v_xor_b32 {V(xb[0][s])}, {32*s}, {V(xb[0][0])}")
        for s in range(4):
            a(f"v_xor_b32 {V(xb[1][s])}, 0x1000, {V(xb[0][s])}")

    def set_addrs():
        for xt in range(2):
            for s in range(4):
                a(f"v_add_u32 {V(xa[xt][s])}, s{sSlot}, {V(xb[xt][s])}")
        for wt in range(2):
            a(f"v_add_u32 {V(wa[wt])}, s{sSlot}, {V(wb[wt])}")

    def reads(st, s):
        for xt in range(2):
            a(f"ds_read_b128 {V(fx[st][xt],4)}, {V(xa[xt][s])}")
            a(f"ds_read_b64_tr_b16 {V(fw[st][xt],2)}, {V(wa[xt])} offset:{s*4096}")
            a(f"ds_read_b64_tr_b16 {V(fw[st][xt]+2,2)}, {V(wa[xt])} offset:{s*4096+1024}")

    def mm(st, isV):
        n = 0
        dots = []
        for r in range(4):
            dots.append(f"v_dot2c_f32_bf16 {V(vS)}, s{sOnes}, {V(fx[st][0]+r)}")
            dots.append(f"v_dot2c_f32_bf16 {V(vQ)}, {V(fx[st][0]+r)}, {V(fx[st][0]+r)}")
            dots.append(f"v_dot2c_f32_bf16 {V(vC)}, s{sOnes}, {V(fw[st][0]+r)}")
        for (xt, wt) in ((0, 0), (0, 1), (1, 0), (1, 1)):
            A_, B_ = (fx[st][xt], fw[st][wt]) if isV else (fw[st][wt], fx[st][xt])
            a(f"v_mfma_f32_32x32x16_bf16 {V(acc[xt][wt],16)}, {V(A_,4)}, {V(B_,4)}, {V(acc[xt][wt],16)}")
            for d in dots[3*n:3*n+3]: a(d)
            n += 1

    def mainloop(isV):
        lab = "V" if isV else "Q"
        a(f"s_mov_b32 s{sSlot}, 0")
        a(f"s_mov_b32 s{sCnt}, {NST}")
        set_addrs()
        a("s_barrier")
        reads(0, 0)
        a(f"L1_loop{lab}:")
        for s in range(3):
            reads((s+1) % 2, s+1)
            a("s_waitcnt lgkmcnt(6)")
            mm(s % 2, isV)
        a(f"s_add_u32 s{sSlot}, s{sSlot}, 32768")
        a(f"s_and_b32 s{sSlot}, s{sSlot}, 0x1ffff")
        a(f"s_sub_u32 s{sCnt}, s{sCnt}, 1")
        set_addrs()
        a(f"s_cmp_eq_u32 s{sCnt}, 0")
        a("s_waitcnt lgkmcnt(0)")
        a(f"s_cbranch_scc1 L1_last{lab}")
        a("s_barrier")
        reads(0, 0)
        mm(1, isV)
        a(f"s_branch L1_loop{lab}")
        a(f"L1_last{lab}:")
        mm(1, isV)
        a("s_nop 2")
        for v in (vS, vQ, vC):
            half_sum(a, v, t[1])
        finalize_stats(a, vS, vQ, vS, vQ, t[1], t[2])
        a(f"s_lshl_b32 s{sT0}, s{sWi}, 8")
        a(f"s_lshl_b32 s{sT1}, s{sWj}, 7")
        a(f"s_add_u32 s{sT2}, s{sT0}, s{sT1}")
        a(f"v_lshl_add_u32 {V(t[1])}, {V(vTok)}, 2, s{sT2}")
        a(f"ds_write_b32 {V(t[1])}, {V(vS)}")
        a(f"ds_write_b32 {V(t[1])}, {V(vQ)} offset:512")
        a(f"s_lshl_b32 s{sT0}, s{sWj}, 8")
        a(f"s_lshl_b32 s{sT1}, s{sWi}, 7")
        a(f"s_add_u32 s{sT0}, s{sT0}, s{sT1}")
        a(f"v_and_b32 {V(t[2])}, 31, {V(vL)}")
        a(f"v_lshl_add_u32 {V(t[2])}, {V(t[2])}, 2, s{sT0}")
        a(f"ds_write_b32 {V(t[2])}, {V(vC)} offset:1024")
        a("s_waitcnt lgkmcnt(0)")
        a("s_barrier")

    xaddrs()
    sHS, sBS, sBase = 44, 45, 46
    a(f"s_mov_b32 s{sHS}, {KV_HEAD}")
    a(f"s_mov_b32 s{sBS}, {BLK}")
    a(f"s_cmp_lt_u32 s{sCT}, 5")
    a(f"s_cmov_b32 s{sHS}, {Q_HEAD}")
    a(f"s_cmov_b32 s{sBS}, {QBLK}")
    a(f"s_cselect_b32 s{sBase}, {WS_Q}, {WS_KV}")
    a(f"s_cselect_b32 s{sQS}, {hex(f32bits(QSCALE))}, 1.0")
    a(f"s_cselect_b32 s{sT0}, 0, 5")
    a(f"s_sub_u32 s{sT0}, s{sCT}, s{sT0}")
    a(f"s_lshl_b32 s{sT0}, s{sT0}, 5")
    a(f"s_lshl_b32 s{sT1}, s{sWj}, 4")
    a(f"s_add_u32 s{sT0}, s{sT0}, s{sT1}")
    a(f"s_lshl_b32 s{sT1}, s{sWi}, 3")
    a(f"s_add_u32 s{sT0}, s{sT0}, s{sT1}")
    a(f"s_mul_i32 s{sBA}, s{sBA}, s{sBS}")
    a(f"s_mul_i32 s{sBB}, s{sBB}, s{sBS}")
    a(f"s_add_u32 s{sBA}, s{sBA}, s{sBase}")
    a(f"s_add_u32 s{sBB}, s{sBB}, s{sBase}")
    a(f"v_lshlrev_b32 {V(t[4])}, 4, {V(vTok)}")
    a(f"v_lshlrev_b32 {V(t[5])}, 3, {V(vTok)}")
    a(f"v_add_u32 {V(t[5])}, 1024, {V(t[5])}")
    for wt in range(2):
        if wt == 1: a(f"s_xor_b32 s{sT0}, s{sT0}, 8")
        for q in range(4):
            o = oaddr[wt][q]
            a(f"s_add_u32 s{sT1}, s{sT0}, {2*q}")
            a(f"v_add_u32 {V(t[1])}, s{sT1}, {V(vH)}")
            a(f"v_mul_u32_u24 {V(t[2])}, 205, {V(t[1])}")
            a(f"v_lshrrev_b32 {V(t[2])}, 10, {V(t[2])}")
            a(f"v_mad_i32_i24 {V(t[1])}, {V(t[2])}, -5, {V(t[1])}")
            a(f"v_lshrrev_b32 {V(t[3])}, 1, {V(t[1])}")
            a(f"v_lshl_add_u32 {V(t[3])}, {V(t[3])}, 9, {V(t[4])}")
            a(f"v_cmp_eq_u32 vcc, 4, {V(t[1])}")
            a(f"v_and_b32 {V(t[1])}, 1, {V(t[1])}")
            a(f"v_lshl_add_u32 {V(t[3])}, {V(t[1])}, 3, {V(t[3])}")
            a(f"v_cndmask_b32 {V(t[3])}, {V(t[3])}, {V(t[5])}, vcc")
            a(f"v_mad_u32_u24 {V(o)}, {V(t[2])}, s{sHS}, {V(t[3])}")
    mainloop(False)
    a(f"v_xor_b32 {V(t[3])}, 128, {V(t[1])}")
    a(f"ds_read_b32 {V(ep+32)}, {V(t[3])}")
    a(f"ds_read_b32 {V(ep+33)}, {V(t[3])} offset:512")
    a(f"v_lshl_add_u32 {V(t[2])}, {V(vH)}, 4, s{sT0}")
    a(f"v_xor_b32 {V(t[3])}, 128, {V(t[2])}")
    for wt in range(2):
        for q in range(4):
            a(f"ds_read_b128 {V(ep+16*wt+4*q,4)}, {V(t[2+wt])} offset:{1024+32*q}")
    a(f"v_mul_f32 {V(vQ)}, s{sQS}, {V(vQ)}")
    a("s_waitcnt lgkmcnt(8)")
    a(f"v_mul_f32 {V(ep+33)}, s{sQS}, {V(ep+33)}")
    a("s_waitcnt lgkmcnt(0)")
    for xt in range(2):
        vm, vr = (vS, vQ) if xt == 0 else (ep+32, ep+33)
        for wt in range(2):
            ac = acc[xt][wt]
            for r in range(16):
                a(f"v_fma_f32 {V(ac+r)}, -{V(vm)}, {V(ep+16*wt+r)}, {V(ac+r)}")
            for r in range(16):
                a(f"v_mul_f32 {V(ac+r)}, {V(vr)}, {V(ac+r)}")
            for r in range(8):
                a(f"v_cvt_pk_bf16_f32 {V(ac+r)}, {V(ac+2*r)}, {V(ac+2*r+1)}")
            for q in range(4):
                a(f"buffer_store_dwordx2 {V(ac+2*q,2)}, {V(oaddr[wt][q])}, s[{rO}:{rO+3}], s{sBA if xt==0 else sBB} offen")
    a("s_endpgm")

    a("L1_consV:")
    a(f"v_bfe_u32 {V(t[1])}, {V(vTok)}, 2, 1")
    a(f"v_bfe_u32 {V(t[2])}, {V(vTok)}, 3, 1")
    a(f"v_and_b32 {V(vTok)}, 0x13, {V(vTok)}")
    a(f"v_lshl_add_u32 {V(vTok)}, {V(t[1])}, 3, {V(vTok)}")
    a(f"v_lshl_add_u32 {V(vTok)}, {V(t[2])}, 2, {V(vTok)}")
    xaddrs()
    a(f"s_sub_u32 s{sT0}, s{sCT}, 10")
    a(f"s_lshl_b32 s{sT0}, s{sT0}, 7")
    a(f"s_lshl_b32 s{sT1}, s{sWj}, 6")
    a(f"s_add_u32 s{sT0}, s{sT0}, s{sT1}")
    a(f"s_lshl_b32 s{sT1}, s{sWi}, 5")
    a(f"s_add_u32 s{sT0}, s{sT0}, s{sT1}")
    a(f"s_mul_i32 s{sBA}, s{sBA}, {BLK}")
    a(f"s_mul_i32 s{sBB}, s{sBB}, {BLK}")
    a(f"s_mov_b32 s{sT2}, {KV_HEAD}")
    a(f"v_and_b32 {V(t[4])}, 31, {V(vL)}")
    a(f"v_mul_u32_u24 {V(t[5])}, {VG}, {V(vH)}")
    a(f"v_add_u32 {V(t[5])}, {WS_KV+1280}, {V(t[5])}")
    for wt in range(2):
        if wt == 1: a(f"s_xor_b32 s{sT0}, s{sT0}, 32")
        a(f"v_add_u32 {V(t[1])}, s{sT0}, {V(t[4])}")
        a(f"v_mul_u32_u24 {V(t[2])}, 3277, {V(t[1])}")
        a(f"v_lshrrev_b32 {V(t[2])}, 16, {V(t[2])}")
        a(f"v_mul_u32_u24 {V(t[3])}, 20, {V(t[2])}")
        a(f"v_sub_u32 {V(t[1])}, {V(t[1])}, {V(t[3])}")
        a(f"v_lshl_add_u32 {V(t[1])}, {V(t[1])}, 4, {V(t[5])}")
        a(f"v_mad_u32_u24 {V(oaddr[wt][0])}, {V(t[2])}, s{sT2}, {V(t[1])}")
    mainloop(True)
    a(f"v_xor_b32 {V(t[3])}, 128, {V(t[2])}")
    a(f"ds_read_b32 {V(ep+32)}, {V(t[3])} offset:1024")
    a(f"v_lshl_add_u32 {V(t[1])}, {V(vH)}, 5, s{sT2}")
    for xt in range(2):
        if xt == 1: a(f"v_xor_b32 {V(t[1])}, 128, {V(t[1])}")
        for k in range(4):
            off = (k // 2) * 64 + (k % 2) * 16
            a(f"ds_read_b128 {V(ep+4*k,4)}, {V(t[1])} offset:{off}")
            a(f"ds_read_b128 {V(ep+16+4*k,4)}, {V(t[1])} offset:{512+off}")
        a("s_waitcnt lgkmcnt(0)")
        for wt in range(2):
            vc = vC if wt == 0 else ep+32
            ac = acc[xt][wt]
            for r in range(16):
                a(f"v_fma_f32 {V(ac+r)}, -{V(ep+r)}, {V(vc)}, {V(ac+r)}")
            for r in range(16):
                a(f"v_mul_f32 {V(ac+r)}, {V(ep+16+r)}, {V(ac+r)}")
            for r in range(8):
                a(f"v_cvt_pk_bf16_f32 {V(ac+r)}, {V(ac+2*r)}, {V(ac+2*r+1)}")
            for m in range(2):
                a(f"buffer_store_dwordx4 {V(ac+4*m,4)}, {V(oaddr[wt][0])}, s[{rO}:{rO+3}], s{sBA if xt==0 else sBB} offen offset:{m*2*VG}")
    a("s_endpgm")

    a("L1_router:")
    srd(a, rW, sWR, ROWB)
    R2 = Regs(2, 256)
    u = [R2.alloc() for _ in range(8)]
    sm = [[R2.alloc() for k in range(3)] for g in range(4)]
    vSW = R2.alloc()
    wr = R2.alloc(20, 4)
    xg = [R2.alloc(20, 4) for g in range(4)]
    cz = R2.alloc(8, 4)
    a(f"s_lshl_b32 s{sT0}, s{sRT}, 3")
    a(f"s_add_u32 s{sT0}, s{sT0}, s{sWave}")
    a(f"s_lshl_b32 s{sT0}, s{sT0}, 4")
    a(f"v_lshrrev_b32 {V(u[0])}, 4, {V(vL)}")
    a(f"v_and_b32 {V(u[1])}, 15, {V(vL)}")
    a(f"v_add_u32 {V(u[2])}, s{sT0}, {V(u[0])}")
    a(f"v_mul_u32_u24 {V(u[2])}, {ROWB}, {V(u[2])}")
    a(f"v_lshlrev_b32 {V(u[3])}, 4, {V(u[1])}")
    a(f"v_add_u32 {V(u[2])}, {V(u[2])}, {V(u[3])}")
    for i in range(5):
        a(f"buffer_load_dwordx4 {V(wr+4*i,4)}, {V(u[3])}, s[{rW}:{rW+3}], 0 offen offset:{256*i}")
    for g in range(4):
        a(f"s_mov_b32 s{sT1}, {4*g*ROWB}")
        for i in range(5):
            a(f"buffer_load_dwordx4 {V(xg[g]+4*i,4)}, {V(u[2])}, s[{rX}:{rX+3}], s{sT1} offen offset:{256*i}")
    a(f"v_lshrrev_b32 {V(u[4])}, 4, v0")
    a(f"s_mov_b32 s{sT1}, {KV_HEAD}")
    a(f"v_mul_lo_u32 {V(u[4])}, {V(u[4])}, s{sT1}")
    a(f"v_bfe_u32 {V(u[5])}, v0, 2, 2")
    a(f"v_mul_u32_u24 {V(u[5])}, {BLK}, {V(u[5])}")
    a(f"v_and_b32 {V(u[6])}, 3, v0")
    a(f"v_mul_u32_u24 {V(u[6])}, {VG}, {V(u[6])}")
    a(f"v_add3_u32 {V(u[4])}, {V(u[4])}, {V(u[5])}, {V(u[6])}")
    a(f"s_mul_i32 s{sT1}, s{sRT}, {4*BLK}")
    a(f"s_add_u32 s{sT1}, s{sT1}, {WS_KV+1280+320}")
    for i in range(4):
        a(f"v_mov_b32 {V(cz+i)}, s{sOnes}")
        a(f"v_mov_b32 {V(cz+4+i)}, 0")
    a(f"buffer_store_dwordx4 {V(cz,4)}, {V(u[4])}, s[{rO}:{rO+3}], s{sT1} offen")
    a(f"buffer_store_dwordx4 {V(cz+4,4)}, {V(u[4])}, s[{rO}:{rO+3}], s{sT1} offen offset:16")
    a(f"v_mov_b32 {V(vSW)}, 0")
    for g in range(4):
        for k in range(3): a(f"v_mov_b32 {V(sm[g][k])}, 0")
    a("s_waitcnt vmcnt(22)")
    for r in range(20):
        a(f"v_dot2c_f32_bf16 {V(vSW)}, s{sOnes}, {V(wr+r)}")
    for g in range(4):
        a(f"s_waitcnt vmcnt({17-5*g})")
        for r in range(20):
            a(f"v_dot2c_f32_bf16 {V(sm[g][0])}, s{sOnes}, {V(xg[g]+r)}")
            a(f"v_dot2c_f32_bf16 {V(sm[g][1])}, {V(xg[g]+r)}, {V(xg[g]+r)}")
            a(f"v_dot2c_f32_bf16 {V(sm[g][2])}, {V(wr+r)}, {V(xg[g]+r)}")
    a("s_nop 2")
    allv = [vSW] + [sm[g][k] for g in range(4) for k in range(3)]
    for sh in (8, 4, 2, 1):
        for v in allv:
            a(f"v_add_f32_dpp {V(v)}, {V(v)}, {V(v)} row_ror:{sh} row_mask:0xf bank_mask:0xf")
    for g in range(1, 4):
        a(f"v_cmp_eq_u32 vcc, {g}, {V(u[1])}")
        a("s_nop 1")
        for k in range(3):
            a(f"v_cndmask_b32 {V(sm[0][k])}, {V(sm[0][k])}, {V(sm[g][k])}, vcc")
    mS, mQ, mR = sm[0]
    m2 = sm[1][0]
    pair = cz
    a("s_waitcnt vmcnt(0)")
    finalize_stats(a, mS, mQ, pair, pair+1, u[4], u[5])
    a(f"v_fma_f32 {V(mR)}, -{V(pair)}, {V(vSW)}, {V(mR)}")
    a(f"v_mul_f32 {V(mR)}, {V(pair+1)}, {V(mR)}")
    a(f"v_lshl_add_u32 {V(u[4])}, {V(u[1])}, 2, {V(u[0])}")
    a(f"v_add_u32 {V(u[5])}, s{sT0}, {V(u[4])}")
    a(f"v_ashrrev_i32 {V(u[6])}, 31, {V(mR)}")
    a(f"v_or_b32 {V(u[6])}, 0x80000000, {V(u[6])}")
    a(f"v_xor_b32 {V(u[6])}, {V(u[6])}, {V(mR)}")
    a(f"v_and_b32 {V(u[6])}, 0xfffff800, {V(u[6])}")
    a(f"v_sub_u32 {V(u[7])}, 2047, {V(u[5])}")
    a(f"v_or_b32 {V(u[6])}, {V(u[6])}, {V(u[7])}")
    a(f"s_lshl_b32 s{sT1}, s{sWave}, 6")
    a(f"v_lshl_add_u32 {V(u[4])}, {V(u[4])}, 2, s{sT1}")
    a(f"v_lshlrev_b32 {V(u[7])}, 3, {V(u[5])}")
    a(f"v_lshlrev_b32 {V(u[5])}, 2, {V(u[5])}")
    a(f"s_mov_b32 s{sT1}, {WS_STAT}")
    a(f"s_mov_b32 s{sT2}, {WS_R}")
    a(f"v_cmp_gt_u32 vcc, 4, {V(u[1])}")
    a("s_and_saveexec_b64 s[44:45], vcc")
    a(f"ds_write_b32 {V(u[4])}, {V(u[6])}")
    a(f"buffer_store_dwordx2 {V(pair,2)}, {V(u[7])}, s[{rO}:{rO+3}], s{sT1} offen")
    a(f"buffer_store_dword {V(mR)}, {V(u[5])}, s[{rO}:{rO+3}], s{sT2} offen")
    a("s_mov_b64 exec, s[44:45]")
    a("s_waitcnt lgkmcnt(0)")
    a("s_barrier")
    a(f"s_cmp_lg_u32 s{sWave}, 0")
    a("s_cbranch_scc1 L1_end")
    a(f"v_lshlrev_b32 {V(u[0])}, 3, {V(vL)}")
    a(f"ds_read_b64 {V(cz,2)}, {V(u[0])}")
    a("s_waitcnt lgkmcnt(0)")
    top8_rounds(a, cz, cz+1, u[1], 48, 44, "r")
    for i in range(8):
        a(f"v_writelane_b32 {V(u[2])}, s{48+i}, {i}")
    a(f"s_lshl_b32 s{sT1}, s{sRT}, 5")
    a(f"s_add_u32 s{sT1}, s{sT1}, {WS_CAND}")
    a(f"v_lshlrev_b32 {V(u[0])}, 2, {V(vL)}")
    a(f"s_mov_b64 exec, 0xff")
    a(f"buffer_store_dword {V(u[2])}, {V(u[0])}, s[{rO}:{rO+3}], s{sT1} offen")
    a("L1_end:")
    a("s_endpgm")
    return name, max(R.hi, R2.hi)
```

```python
from asmlib import *
from layout import *
from k1 import top8_rounds, bf16_round

K2_LDS = 81920
TILE = 8 * BLK
XCH7 = 3 * TILE
FLAGS = XCH7 + 3072

def gen_k2(a):
    name = "attn_kernel"
    kernel_header(a, name)
    sWS = 4
    rKV, rQ = 8, 12
    sWave, sHead, sQb, sT0, sT1, sT2 = 16, 17, 18, 19, 20, 21
    sTile, sM0, sM0b, sCnt, sDelta, sSlot, sPass, sTb = 22, 23, 24, 25, 26, 27, 28, 29
    sHi = 30
    sSo = 32
    vL = 1
    a(f"s_cmp_ge_u32 s2, {256+NW}")
    a("s_cbranch_scc1 L2_end")
    a(f"s_load_dwordx2 s[{sWS}:{sWS+1}], s[0:1], 80")
    a("v_lshrrev_b32 v2, 6, v0")
    a(f"v_and_b32 {V(vL)}, 63, v0")
    a(f"v_readfirstlane_b32 s{sWave}, v2")
    a("s_cmp_ge_u32 s2, 256")
    a("s_cbranch_scc1 L2_moe")
    a("s_setprio 1")
    R = Regs(2, 128)
    t = [R.alloc() for _ in range(4)]
    vDma, vKa, vKb, vV, vIdx = [R.alloc() for _ in range(5)]
    Qa = [R.alloc(4, 4) for _ in range(2)]
    Qb = [R.alloc(2, 2) for _ in range(2)]
    Ka = R.alloc(4, 4); Kb = R.alloc(2, 2)
    Va = [R.alloc(4, 4) for _ in range(2)]
    Vb = [R.alloc(4, 4) for _ in range(2)]
    O = [R.alloc(16, 4) for _ in range(2)]
    Sx = [R.alloc(16, 4) for _ in range(2)]
    a(f"s_lshr_b32 s{sT0}, s2, 3")
    a(f"s_and_b32 s{sHead}, s2, 7")
    a(f"s_lshl_b32 s{sHead}, s{sHead}, 2")
    a(f"s_and_b32 s{sT1}, s{sT0}, 3")
    a(f"s_add_u32 s{sHead}, s{sHead}, s{sT1}")
    a(f"s_lshr_b32 s{sQb}, s{sT0}, 2")
    a(f"s_min_u32 s{sT0}, s{sWave}, 6")
    a(f"s_mul_i32 s{sM0b}, s{sT0}, 3072")
    a(f"s_mul_i32 s{sT1}, s{sHead}, {KV_HEAD}")
    a(f"s_add_u32 s{sT1}, s{sT1}, s{sM0b}")
    a(f"v_lshlrev_b32 {V(t[0])}, 4, {V(vL)}")
    a(f"v_add_u32 {V(vDma)}, s{sT1}, {V(t[0])}")
    a(f"s_and_b32 s{sT0}, s{sWave}, 3")
    a(f"s_lshl_b32 s{sT0}, s{sT0}, 1")
    a(f"s_lshr_b32 s{sT1}, s{sWave}, 2")
    a(f"s_add_u32 s{sT0}, s{sT0}, s{sT1}")
    a(f"s_lshl_b32 s{sTb}, s{sQb}, 3")
    a(f"s_add_u32 s{sTb}, s{sTb}, s{sT0}")
    a(f"s_mul_i32 s{sT2}, s{sT1}, {4*BLK}")
    a(f"s_mov_b32 s{sPass}, 0")
    a(f"s_mov_b32 s{sSo+1}, {TILE}")
    a(f"s_mov_b32 s{sHi}, 0")
    a(f"s_mov_b32 s{sHi+1}, -1")
    a("s_waitcnt lgkmcnt(0)")
    srd(a, rKV, sWS, KV_BYTES, WS_KV)
    srd(a, rQ, sWS, WS_END)

    def dma(next_slot=True):
        a(f"s_mul_i32 s{sSo}, s{sTile}, {TILE}")
        a(f"s_mov_b32 m0, s{sM0}")
        a(f"s_add_u32 s{sTile}, s{sTile}, 1")
        a(f"s_and_b32 s{sTile}, s{sTile}, 7")
        for i in range(3):
            a(f"buffer_load_dwordx4 {V(vDma)}, s[{rKV}:{rKV+3}], s{sSo} offen offset:{1024*i} lds")
    a(f"s_mul_i32 s{sT0}, s{sHead}, {Q_HEAD}")
    a(f"s_add_u32 s{sT0}, s{sT0}, {WS_Q}")
    a(f"s_mul_i32 s{sT1}, s{sTb}, {QBLK}")
    a(f"s_add_u32 s{sSo}, s{sT0}, s{sT1}")
    a(f"s_xor_b32 s{sT1}, s{sTb}, 1")
    a(f"s_mul_i32 s{sT1}, s{sT1}, {QBLK}")
    a(f"s_add_u32 s{sT1}, s{sT0}, s{sT1}")
    a(f"v_and_b32 {V(t[1])}, 31, {V(vL)}")
    a(f"v_lshlrev_b32 {V(t[2])}, 3, {V(t[1])}")
    a(f"buffer_load_dwordx4 {V(Qa[0],4)}, {V(t[0])}, s[{rQ}:{rQ+3}], s{sSo} offen")
    a(f"buffer_load_dwordx2 {V(Qb[0],2)}, {V(t[2])}, s[{rQ}:{rQ+3}], s{sSo} offen offset:1024")
    a(f"buffer_load_dwordx4 {V(Qa[1],4)}, {V(t[0])}, s[{rQ}:{rQ+3}], s{sT1} offen")
    a(f"buffer_load_dwordx2 {V(Qb[1],2)}, {V(t[2])}, s[{rQ}:{rQ+3}], s{sT1} offen offset:1024")
    a("L2_start:")
    a(f"s_mov_b32 s{sTile}, s{sQb}")
    a(f"s_mov_b32 s{sM0}, s{sM0b}")
    dma()
    a(f"s_add_u32 s{sM0}, s{sM0b}, {TILE}")
    dma()
    a(f"s_add_u32 s{sM0}, s{sM0b}, {2*TILE}")
    a(f"v_lshlrev_b32 {V(vKa)}, 4, {V(vL)}")
    a(f"v_and_b32 {V(t[1])}, 31, {V(vL)}")
    a(f"v_lshlrev_b32 {V(vKb)}, 3, {V(t[1])}")
    a(f"v_add_u32 {V(vKb)}, 1024, {V(vKb)}")
    a(f"v_mov_b32 {V(t[2])}, {1280+320}")
    a(f"v_cndmask_b32 {V(vKb)}, {V(vKb)}, {V(t[2])}, s[{sHi}:{sHi+1}]")
    a(f"v_min_u32 {V(t[1])}, 21, {V(t[1])}")
    a(f"v_lshlrev_b32 {V(t[1])}, 4, {V(t[1])}")
    a(f"v_lshrrev_b32 {V(t[2])}, 5, {V(vL)}")
    a(f"v_mul_u32_u24 {V(t[2])}, {VG}, {V(t[2])}")
    a(f"v_add3_u32 {V(vV)}, {V(t[1])}, {V(t[2])}, s{sT2}")
    a(f"v_add_u32 {V(vV)}, 1280, {V(vV)}")
    a(f"v_mov_b32 {V(vIdx)}, 0xdddddddd")
    for x in range(2):
        for r in range(16): a(f"v_mov_b32 {V(O[x]+r)}, 0")
    for r in range(8, 16): a(f"v_mov_b32 {V(Sx[1]+r)}, 0")
    for r in range(4): a(f"v_mov_b32 {V(Vb[1]+r)}, 0")

    def ex(r): a(f"v_exp_f32 {V(r)}, {V(r)}")
    def qk1(x): a(f"v_mfma_f32_32x32x16_bf16 {V(Sx[x],16)}, {V(Ka,4)}, {V(Qa[x],4)}, 0")
    def qk2(x): a(f"v_mfma_f32_32x32x8_bf16 {V(Sx[x],16)}, {V(Kb,2)}, {V(Qb[x],2)}, {V(Sx[x],16)}")
    def pv(x, vf, half): a(f"v_smfmac_f32_32x32x32_bf16 {V(O[x],16)}, {V(vf,4)}, {V(Sx[x]+8*half,8)}, {V(vIdx)}")
    def rdK(off):
        a(f"ds_read_b128 {V(Ka,4)}, {V(vKa)} offset:{off}")
        a(f"ds_read_b64 {V(Kb,2)}, {V(vKb)} offset:{off}")
    def rdV(buf, off):
        a(f"ds_read_b128 {V(Va[buf],4)}, {V(vV)} offset:{off}")
        a(f"ds_read_b128 {V(Vb[buf],4)}, {V(vV)} offset:{off+2*VG}")
    def rowmax(x, dst, first):
        s = Sx[x]
        if first:
            a(f"v_max3_f32 {V(dst)}, {V(s)}, {V(s+1)}, {V(s+2)}")
            rest = list(range(3, 16))
        else:
            rest = list(range(16))
        while len(rest) >= 2:
            a(f"v_max3_f32 {V(dst)}, {V(dst)}, {V(s+rest[0])}, {V(s+rest[1])}")
            rest = rest[2:]
        if rest: a(f"v_max_f32 {V(dst)}, {V(dst)}, {V(s+rest[0])}")
    def set_negmax(x, m):
        u, w = t[2], t[3]
        a(f"v_mov_b32 {V(u)}, {V(m)}")
        a("s_nop 1")
        a(f"v_permlane32_swap_b32 {V(u)}, {V(m)}")
        a("s_nop 1")
        a(f"v_max_f32 {V(m)}, {V(u)}, {V(m)}")
        a(f"v_sub_f32 {V(m)}, 0, {V(m)}")
        bf16_round(a, u, m)
        a(f"v_sub_f32 {V(m)}, {V(m)}, {V(u)}")
        bf16_round(a, w, m)
        a(f"v_sub_f32 {V(m)}, {V(m)}, {V(w)}")
        a(f"v_cvt_pk_bf16_f32 {V(u)}, {V(u)}, {V(w)}")
        a(f"v_cvt_pk_bf16_f32 {V(w)}, {V(m)}, 0")
        a(f"v_cndmask_b32 {V(Qb[x])}, {V(Qb[x])}, {V(u)}, s[{sHi}:{sHi+1}]")
        a(f"v_cndmask_b32 {V(Qb[x]+1)}, {V(Qb[x]+1)}, {V(w)}, s[{sHi}:{sHi+1}]")

    a("s_waitcnt vmcnt(3)")
    a("s_barrier")
    a(f"s_cmp_lg_u32 s{sPass}, 0")
    a("s_cbranch_scc1 L2_havemax")
    rdK(0)
    for x in range(2):
        for r in range(2):
            a(f"v_cndmask_b32 {V(Qb[x]+r)}, {V(Qb[x]+r)}, 0, s[{sHi}:{sHi+1}]")
    a("s_waitcnt lgkmcnt(0)")
    qk1(0); qk2(0)
    a(f"v_mfma_f32_32x32x16_bf16 {V(O[1],16)}, {V(Ka,4)}, {V(Qa[1],4)}, 0")
    a(f"v_mfma_f32_32x32x8_bf16 {V(O[1],16)}, {V(Kb,2)}, {V(Qb[1],2)}, {V(O[1],16)}")
    a("s_nop 7")
    rowmax(0, t[0], True)
    set_negmax(0, t[0])
    sv = Sx[1]; Sx[1] = O[1]
    rowmax(1, t[0], True)
    Sx[1] = sv
    set_negmax(1, t[0])
    for r in range(16): a(f"v_mov_b32 {V(O[1]+r)}, 0")
    a("L2_havemax:")
    a(f"v_add_u32 {V(vKa)}, s{sT2}, {V(vKa)}")
    a(f"v_add_u32 {V(vKb)}, s{sT2}, {V(vKb)}")
    rdK(0)
    rdV(0, 0)
    a(f"s_mov_b32 s{sCnt}, 8")
    a(f"s_mov_b32 s{sSlot}, 0")
    a("s_waitcnt lgkmcnt(2)")
    qk1(0); qk2(0)
    a("s_waitcnt lgkmcnt(0)")
    a("s_nop 7")
    a(".p2align 6")
    a("L2_loop:")
    for n in range(4):
        cur, nxt = n % 2, (n + 1) % 2
        off = (n + 1) * BLK if n < 3 else 0
        Sa, Sb = Sx
        ex(Sa); ex(Sa + 1)
        pv(1, Vb[nxt], 1)
        if n == 3:
            a(f"s_add_u32 s{sSlot}, s{sSlot}, 1")
            a(f"s_cmp_eq_u32 s{sSlot}, 3")
            a(f"s_cselect_b32 s{sDelta}, {(-2*TILE) & 0xffffffff}, s{sSo+1}")
            a(f"s_cselect_b32 s{sSlot}, 0, s{sSlot}")
            a(f"v_add_u32 {V(vV)}, s{sDelta}, {V(vV)}")
            a(f"v_add_u32 {V(vKa)}, s{sDelta}, {V(vKa)}")
            a(f"v_add_u32 {V(vKb)}, s{sDelta}, {V(vKb)}")
            a(f"s_sub_u32 s{sCnt}, s{sCnt}, 1")
            a(f"s_cmp_lt_u32 s{sCnt}, 2")
            a("s_waitcnt vmcnt(0)")
            a("s_barrier")
            a("s_cbranch_scc1 L2_nodma")
            dma()
            a(f"s_add_u32 s{sM0}, s{sM0}, {TILE}")
            a(f"s_sub_u32 s{sT0}, s{sM0}, {3*TILE}")
            a(f"s_cmp_ge_u32 s{sM0}, {3*TILE}")
            a(f"s_cselect_b32 s{sM0}, s{sT0}, s{sM0}")
            a("L2_nodma:")
        rdV(nxt, off)
        for i in range(2, 6): ex(Sa + i)
        qk1(1)
        for i in range(6, 10): ex(Sa + i)
        qk2(1)
        rdK(off)
        for i in range(10, 14): ex(Sa + i)
        pv(0, Va[cur], 0)
        for i in range(14, 16): ex(Sa + i)
        ex(Sb); ex(Sb + 1)
        pv(0, Vb[cur], 1)
        for i in range(2, 6): ex(Sb + i)
        a("s_waitcnt lgkmcnt(0)")
        qk1(0)
        for i in range(6, 10): ex(Sb + i)
        qk2(0)
        for i in range(10, 14): ex(Sb + i)
        pv(1, Va[cur], 0)
        for i in range(14, 16): ex(Sb + i)
    a(f"s_cmp_lg_u32 s{sCnt}, 0")
    a("s_cbranch_scc1 L2_loop")
    a("s_nop 1")
    pv(1, Vb[1], 1)
    a(f"s_mul_i32 s{sT0}, s{sWave}, 3072")
    a(f"s_cmp_eq_u32 s{sWave}, 7")
    a(f"s_cselect_b32 s{sT0}, {XCH7}, s{sT0}")
    a(f"s_xor_b32 s{sT1}, s{sWave}, 4")
    a(f"s_mul_i32 s{sSo}, s{sT1}, 3072")
    a(f"s_cmp_eq_u32 s{sT1}, 7")
    a(f"s_cselect_b32 s{sT1}, {XCH7}, s{sSo}")
    a(f"v_lshlrev_b32 {V(vKa)}, 4, {V(vL)}")
    a(f"v_add_u32 {V(vKb)}, s{sT0}, {V(vKa)}")
    a(f"v_add_u32 {V(vV)}, s{sT1}, {V(vKa)}")
    a(f"v_mov_b32 {V(t[0])}, 0")
    a(f"s_mov_b32 s{sT0}, {hex(f32bits(2.0**-27))}")
    for r in range(12):
        a(f"v_fma_f32 {V(t[0])}, |{V(O[0]+r)}|, s{sT0}, {V(t[0])}")
    for r in range(12):
        a(f"v_fma_f32 {V(t[0])}, |{V(O[1]+r)}|, s{sT0}, {V(t[0])}")
    for k in range(3):
        a(f"ds_write_b128 {V(vKb)}, {V(O[1]+4*k,4)} offset:{1024*k}")
    a(f"s_mov_b32 s{sT0}, {hex(f32bits(2.0**73))}")
    a(f"v_cmp_nle_f32 vcc, {V(t[0])}, s{sT0}")
    a(f"s_lshl_b32 s{sT1}, s{sWave}, 2")
    a(f"s_add_u32 s{sT1}, s{sT1}, {FLAGS}")
    a(f"v_mov_b32 {V(t[1])}, s{sT1}")
    a(f"s_or_b32 s{sT0}, vcc_lo, vcc_hi")
    a(f"v_mov_b32 {V(t[2])}, s{sT0}")
    a(f"ds_write_b32 {V(t[1])}, {V(t[2])}")
    a(f"v_mov_b32 {V(t[1])}, {FLAGS}")
    a("s_waitcnt lgkmcnt(0)")
    a("s_barrier")
    a(f"ds_read_b128 {V(Va[0],4)}, {V(t[1])}")
    a(f"ds_read_b128 {V(Va[1],4)}, {V(t[1])} offset:16")
    for k in range(3):
        a(f"ds_read_b128 {V(Sx[0]+4*k,4)}, {V(vV)} offset:{1024*k}")
    a(f"s_lshr_b32 s{sT0}, s{sHead}, 1")
    a(f"s_mul_i32 s{sT0}, s{sT0}, {5*512}")
    a(f"s_mul_i32 s{sT1}, s{sTb}, {O_TB}")
    a(f"s_add_u32 s{sT0}, s{sT0}, s{sT1}")
    a(f"s_add_u32 s{sT0}, s{sT0}, {WS_O}")
    a(f"s_and_b32 s{sT1}, s{sHead}, 1")
    a(f"s_lshl_b32 s{sSo}, s{sT1}, 10")
    a(f"s_add_u32 s{sSo}, s{sSo}, s{sT0}")
    a(f"s_lshl_b32 s{sT1}, s{sT1}, 3")
    a(f"s_add_u32 s{sT0}, s{sT0}, s{sT1}")
    a("s_waitcnt lgkmcnt(3)")
    a(f"v_or3_b32 {V(t[0])}, {V(Va[0])}, {V(Va[0]+1)}, {V(Va[0]+2)}")
    a(f"v_or3_b32 {V(t[0])}, {V(t[0])}, {V(Va[0]+3)}, {V(Va[1])}")
    a(f"v_or3_b32 {V(t[0])}, {V(t[0])}, {V(Va[1]+1)}, {V(Va[1]+2)}")
    a(f"v_or_b32 {V(t[0])}, {V(t[0])}, {V(Va[1]+3)}")
    a("s_nop 0")
    a(f"v_readfirstlane_b32 s{sT1}, {V(t[0])}")
    a(f"s_cmp_eq_u32 s{sPass}, 0")
    a(f"s_cselect_b32 s{sT1}, s{sT1}, 0")
    a(f"s_cmp_lg_u32 s{sT1}, 0")
    a("s_waitcnt lgkmcnt(0)")
    a("s_cbranch_scc1 L2_fallback")
    o = O[0]
    for r in range(12):
        a(f"v_add_f32 {V(o+r)}, {V(o+r)}, {V(Sx[0]+r)}")
    a(f"v_mov_b32 {V(t[0])}, {V(o+8)}")
    a(f"v_mov_b32 {V(t[1])}, {V(o+8)}")
    a("s_nop 1")
    a(f"v_permlane32_swap_b32 {V(t[0])}, {V(t[1])}")
    a("s_nop 1")
    a(f"v_rcp_f32 {V(t[1])}, {V(t[1])}")
    a("s_nop 0")
    for r in range(12):
        a(f"v_mul_f32 {V(o+r)}, {V(t[1])}, {V(o+r)}")
    for r in range(6):
        a(f"v_cvt_pk_bf16_f32 {V(o+r)}, {V(o+2*r)}, {V(o+2*r+1)}")
    a("s_nop 1")
    a(f"v_permlane32_swap_b32 {V(o)}, {V(o+2)}")
    a(f"v_permlane32_swap_b32 {V(o+1)}, {V(o+3)}")
    a("s_nop 1")
    a(f"buffer_store_dwordx4 {V(o,4)}, {V(vKa)}, s[{rQ}:{rQ+3}], s{sSo} offen")
    a("s_mov_b32 exec_hi, 0")
    a(f"buffer_store_dwordx2 {V(o+4,2)}, {V(vKa)}, s[{rQ}:{rQ+3}], s{sT0} offen offset:2048")
    a("s_endpgm")

    a("L2_fallback:")
    a(f"s_mov_b32 s{sPass}, 1")
    a(f"s_mov_b32 s{sTile}, 0")
    a(f"s_mov_b32 s{sM0}, s{sM0b}")
    a(f"s_mov_b32 s{sCnt}, 8")
    a(f"v_and_b32 {V(t[1])}, 31, {V(vL)}")
    a(f"v_lshlrev_b32 {V(vKb)}, 3, {V(t[1])}")
    a(f"v_add_u32 {V(vKb)}, 1024, {V(vKb)}")
    for x in range(2):
        for r in range(2):
            a(f"v_cndmask_b32 {V(Qb[x]+r)}, {V(Qb[x]+r)}, 0, s[{sHi}:{sHi+1}]")
    a(f"v_mov_b32 {V(t[0])}, 0xff800000")
    a(f"v_mov_b32 {V(t[1])}, 0xff800000")
    a("L2_fb_tile:")
    a("s_barrier")
    dma()
    a("s_waitcnt vmcnt(0)")
    a("s_barrier")
    a(f"s_mov_b32 s{sSlot}, 8")
    a(f"v_mov_b32 {V(vV)}, {V(vKa)}")
    a(f"v_mov_b32 {V(vIdx)}, {V(vKb)}")
    a("L2_fb_blk:")
    a(f"ds_read_b128 {V(Ka,4)}, {V(vV)}")
    a(f"ds_read_b64 {V(Kb,2)}, {V(vIdx)}")
    a(f"v_add_u32 {V(vV)}, {BLK}, {V(vV)}")
    a(f"v_add_u32 {V(vIdx)}, {BLK}, {V(vIdx)}")
    a("s_waitcnt lgkmcnt(0)")
    qk1(0); qk2(0); qk1(1); qk2(1)
    a("s_nop 15")
    rowmax(0, t[0], False)
    rowmax(1, t[1], False)
    a(f"s_sub_u32 s{sSlot}, s{sSlot}, 1")
    a(f"s_cmp_lg_u32 s{sSlot}, 0")
    a("s_cbranch_scc1 L2_fb_blk")
    a(f"s_sub_u32 s{sCnt}, s{sCnt}, 1")
    a(f"s_cmp_lg_u32 s{sCnt}, 0")
    a("s_cbranch_scc1 L2_fb_tile")
    set_negmax(0, t[0])
    set_negmax(1, t[1])
    a("s_barrier")
    a("s_branch L2_start")

    a("L2_moe:")
    a(f"s_cmp_ge_u32 s{sWave}, 4")
    a("s_cbranch_scc1 L2_end")
    sX, sG, sU, sD = 6, 36, 38, 40
    rX, rG, rU, rD = 8, 44, 48, 52
    rW = 12
    sWi = 17
    sK = 56
    a(f"s_load_dwordx2 s[{sX}:{sX+1}], s[0:1], 0")
    a(f"s_load_dwordx4 s[{sG}:{sG+3}], s[0:1], 40")
    a(f"s_load_dwordx2 s[{sD}:{sD+1}], s[0:1], 56")
    M = Regs(2, 128)
    u = [M.alloc() for _ in range(8)]
    vK = M.alloc(2, 2); vSt = M.alloc(2, 2); vR = M.alloc()
    xb = M.alloc(20, 4)
    wf = M.alloc(40, 4)
    G = M.alloc(4, 4); U = M.alloc(4, 4)
    hb = M.alloc(2, 2)
    a(f"s_sub_u32 s{sWi}, s2, 256")
    a(f"v_lshlrev_b32 {V(u[0])}, 3, {V(vL)}")
    a("s_waitcnt lgkmcnt(0)")
    srd(a, rW, sWS, WS_END)
    srd(a, rX, sX, X_BYTES)
    srd(a, rG, sG, WG_BYTES)
    srd(a, rU, sU, WG_BYTES)
    srd(a, rD, sD, WD_BYTES)
    a(f"s_mov_b32 s{sT0}, {WS_CAND}")
    a(f"buffer_load_dwordx2 {V(vK,2)}, {V(u[0])}, s[{rW}:{rW+3}], s{sT0} offen")
    a(f"v_lshrrev_b32 {V(u[1])}, 1, {V(vL)}")
    a(f"v_mul_u32_u24 {V(u[1])}, {WG_ROWB}, {V(u[1])}")
    a(f"v_and_b32 {V(u[2])}, 1, {V(vL)}")
    a(f"v_lshl_add_u32 {V(u[1])}, {V(u[2])}, 4, {V(u[1])}")
    a(f"s_mul_i32 s{sT0}, s{sWave}, {160*WG_ROWB}")
    a(f"s_lshl_b32 s{sT1}, s{sWi}, 5")
    a(f"s_add_u32 s{sT0}, s{sT0}, s{sT1}")
    a(f"s_mul_i32 s{sT2}, s{sWave}, 5120")
    a(f"v_lshlrev_b32 {V(u[2])}, 4, {V(vL)}")
    for i in range(5):
        a(f"s_add_u32 m0, s{sT2}, {1024*i}")
        a(f"s_add_u32 s{sT1}, s{sT0}, {32*i*WG_ROWB}")
        a(f"buffer_load_dwordx4 {V(u[1])}, s[{rG}:{rG+3}], s{sT1} offen lds")
        a(f"s_add_u32 m0, s{sT2}, {20480+1024*i}")
        a("s_nop 0")
        a(f"buffer_load_dwordx4 {V(u[1])}, s[{rU}:{rU+3}], s{sT1} offen lds")
    a(f"s_mul_i32 s{sT0}, s{sWi}, 20480")
    a(f"s_add_u32 s{sT0}, s{sT0}, s{sT2}")
    a(f"s_add_u32 m0, s{sT2}, 40960")
    a(f"s_add_u32 s{sT1}, s{sT0}, 4096")
    for i in range(4):
        a(f"buffer_load_dwordx4 {V(u[2])}, s[{rD}:{rD+3}], s{sT0} offen offset:{1024*i} lds")
    a(f"s_add_u32 m0, s{sT2}, {40960+4096}")
    a("s_nop 0")
    a(f"buffer_load_dwordx4 {V(u[2])}, s[{rD}:{rD+3}], s{sT1} offen lds")
    a("s_waitcnt vmcnt(15)")
    top8_rounds(a, vK, vK + 1, u[3], sK, 64, "m")
    a(f"v_mov_b32 {V(u[3])}, 2047")
    for i in range(8):
        a(f"v_writelane_b32 {V(u[3])}, s{sK+i}, {i}")
    a(f"v_and_b32 {V(u[4])}, 15, {V(vL)}")
    a(f"v_lshlrev_b32 {V(u[5])}, 2, {V(u[4])}")
    a(f"v_and_b32 {V(u[3])}, 0x7ff, {V(u[3])}")
    a(f"v_sub_u32 {V(u[3])}, 2047, {V(u[3])}")
    a(f"ds_bpermute_b32 {V(u[3])}, {V(u[5])}, {V(u[3])}")
    a(f"v_lshrrev_b32 {V(u[6])}, 4, {V(vL)}")
    a(f"s_mul_i32 s{sT0}, s{sWave}, 320")
    a(f"s_mov_b32 s{sT1}, {WS_STAT}")
    a(f"s_mov_b32 s{sT2}, {WS_R}")
    a("s_waitcnt lgkmcnt(0)")
    a(f"v_mul_u32_u24 {V(u[5])}, {ROWB}, {V(u[3])}")
    a(f"v_lshl_add_u32 {V(u[5])}, {V(u[6])}, 4, {V(u[5])}")
    for s in range(5):
        a(f"buffer_load_dwordx4 {V(xb+4*s,4)}, {V(u[5])}, s[{rX}:{rX+3}], s{sT0} offen offset:{64*s}")
    a(f"v_lshlrev_b32 {V(u[7])}, 3, {V(u[3])}")
    a(f"v_lshlrev_b32 {V(u[5])}, 2, {V(u[3])}")
    a(f"buffer_load_dwordx2 {V(vSt,2)}, {V(u[7])}, s[{rW}:{rW+3}], s{sT1} offen")
    a(f"buffer_load_dword {V(vR)}, {V(u[5])}, s[{rW}:{rW+3}], s{sT2} offen")
    a(f"v_bfe_u32 {V(u[5])}, {V(vL)}, 2, 2")
    a(f"v_lshl_add_u32 {V(u[7])}, {V(u[6])}, 3, {V(u[5])}")
    a(f"v_lshlrev_b32 {V(u[7])}, 5, {V(u[7])}")
    a(f"v_and_b32 {V(u[0])}, 3, {V(vL)}")
    a(f"v_lshl_add_u32 {V(u[7])}, {V(u[0])}, 3, {V(u[7])}")
    a(f"s_mul_i32 s{sT0}, s{sWave}, 5120")
    a(f"v_add_u32 {V(u[7])}, s{sT0}, {V(u[7])}")
    a("s_waitcnt vmcnt(12)")
    for s in range(5):
        for mtx in range(2):
            for tt in range(2):
                a(f"ds_read_b64_tr_b16 {V(wf+8*s+4*mtx+2*tt,2)}, {V(u[7])} offset:{20480*mtx+1024*s+128*tt}")
    a(f"v_cmp_le_u32 vcc, 8, {V(u[4])}")
    a(f"v_mov_b32 {V(u[1])}, 0x3f803f80")
    a("s_waitcnt vmcnt(2)")
    for r in range(20):
        a(f"v_cndmask_b32 {V(xb+r)}, {V(xb+r)}, {V(u[1])}, vcc")
    a("s_waitcnt lgkmcnt(0)")
    a("s_nop 1")
    for s in range(5):
        cg = "0" if s == 0 else V(G, 4)
        cu = "0" if s == 0 else V(U, 4)
        a(f"v_mfma_f32_16x16x32_bf16 {V(G,4)}, {V(wf+8*s,4)}, {V(xb+4*s,4)}, {cg}")
        a(f"v_mfma_f32_16x16x32_bf16 {V(U,4)}, {V(wf+8*s+4,4)}, {V(xb+4*s,4)}, {cu}")
    PART = 61440
    a(f"s_lshl_b32 s{sT0}, s{sWave}, 11")
    a(f"s_add_u32 s{sT0}, s{sT0}, {PART}")
    a(f"v_add_u32 {V(u[1])}, s{sT0}, {V(u[2])}")
    a(f"v_add_u32 {V(u[2])}, {PART}, {V(u[2])}")
    a(f"v_lshl_add_u32 {V(u[7])}, {V(u[6])}, 2, {V(u[5])}")
    a(f"v_mul_u32_u24 {V(u[7])}, {ROWB}, {V(u[7])}")
    a(f"v_lshl_add_u32 {V(u[7])}, {V(u[0])}, 3, {V(u[7])}")
    a(f"s_mul_i32 s{sT0}, s{sWave}, 320")
    a(f"s_add_u32 s{sT0}, s{sT0}, 40960")
    a(f"v_add_u32 {V(u[7])}, s{sT0}, {V(u[7])}")
    a("s_nop 4")
    a(f"ds_write_b128 {V(u[1])}, {V(G,4)}")
    a(f"ds_write_b128 {V(u[1])}, {V(U,4)} offset:1024")
    a("s_waitcnt vmcnt(0) lgkmcnt(0)")
    a("s_barrier")
    for w in range(4):
        for mtx in range(2):
            a(f"ds_read_b128 {V(wf+8*w+4*mtx,4)}, {V(u[2])} offset:{2048*w+1024*mtx}")
    for T in range(10):
        a(f"ds_read_b64_tr_b16 {V(xb+2*T,2)}, {V(u[7])} offset:{32*T}")
    a("s_waitcnt lgkmcnt(10)")
    for mtx, dst in ((0, G), (1, U)):
        for r in range(4):
            a(f"v_add_f32 {V(dst+r)}, {V(wf+4*mtx+r)}, {V(wf+8+4*mtx+r)}")
            a(f"v_add_f32 {V(wf+16+4*mtx+r)}, {V(wf+16+4*mtx+r)}, {V(wf+24+4*mtx+r)}")
        for r in range(4):
            a(f"v_add_f32 {V(dst+r)}, {V(dst+r)}, {V(wf+16+4*mtx+r)}")
    a("s_nop 1")
    for i in range(8):
        a(f"v_mov_b32_dpp {V(wf+i)}, {V(G+i)} row_newbcast:8 row_mask:0xf bank_mask:0xf")
    assert U == G + 4
    for i in range(8):
        a(f"v_fma_f32 {V(G+i)}, -{V(vSt)}, {V(wf+i)}, {V(G+i)}")
    for i in range(8):
        a(f"v_mul_f32 {V(G+i)}, {V(vSt+1)}, {V(G+i)}")
    for i in range(8):
        bf16_round(a, G + i, G + i)
    for i in range(4):
        a(f"v_mul_f32 {V(wf+i)}, {hex(f32bits(-1.4426950408889634))}, {V(G+i)}")
    for i in range(4): a(f"v_exp_f32 {V(wf+i)}, {V(wf+i)}")
    for i in range(4): a(f"v_add_f32 {V(wf+i)}, 1.0, {V(wf+i)}")
    for i in range(4): a(f"v_rcp_f32 {V(wf+i)}, {V(wf+i)}")
    for i in range(4): a(f"v_mul_f32 {V(G+i)}, {V(G+i)}, {V(wf+i)}")
    for i in range(4): bf16_round(a, G + i, G + i)
    for i in range(4): a(f"v_mul_f32 {V(G+i)}, {V(G+i)}, {V(U+i)}")
    a(f"v_cvt_pk_bf16_f32 {V(hb)}, {V(G)}, {V(G+1)}")
    a(f"v_cvt_pk_bf16_f32 {V(hb+1)}, {V(G+2)}, {V(G+3)}")
    a(f"v_mul_u32_u24 {V(u[1])}, 2560, {V(u[4])}")
    a(f"v_lshl_add_u32 {V(u[1])}, {V(u[6])}, 4, {V(u[1])}")
    a(f"s_mul_i32 s{sT0}, s{sWi}, 20480")
    a(f"s_mul_i32 s{sT1}, s{sWave}, 640")
    a(f"s_add_u32 s{sT0}, s{sT0}, s{sT1}")
    a(f"s_add_u32 s{sT0}, s{sT0}, {WS_YP}")
    a("s_waitcnt lgkmcnt(0)")
    for T in range(10):
        a(f"v_mfma_f32_16x16x16_bf16 {V(wf+4*T,4)}, {V(xb+2*T,2)}, {V(hb,2)}, 0")
    bf16_round(a, vR, vR)
    a(f"v_mul_f32 {V(vR)}, {hex(f32bits(-1.4426950408889634))}, {V(vR)}")
    a(f"v_exp_f32 {V(vR)}, {V(vR)}")
    a("s_nop 0")
    a(f"v_add_f32 {V(vR)}, 1.0, {V(vR)}")
    a(f"v_rcp_f32 {V(vR)}, {V(vR)}")
    a("s_nop 0")
    bf16_round(a, vR, vR)
    a(f"v_lshlrev_b32 {V(u[0])}, 2, {V(vL)}")
    a(f"s_mov_b32 exec_lo, 0x00ff00ff")
    a(f"s_mov_b32 exec_hi, 0x00ff00ff")
    for T in range(10):
        a(f"buffer_store_dwordx4 {V(wf+4*T,4)}, {V(u[1])}, s[{rW}:{rW+3}], s{sT0} offen offset:{64*T}")
    a(f"s_or_b32 s{sT1}, s{sWi}, s{sWave}")
    a(f"s_cmp_lg_u32 s{sT1}, 0")
    a("s_cbranch_scc1 L2_end")
    a("s_mov_b64 exec, 0xff")
    a(f"s_mov_b32 s{sT1}, {WS_SEL}")
    a(f"buffer_store_dword {V(u[3])}, {V(u[0])}, s[{rW}:{rW+3}], s{sT1} offen")
    a(f"buffer_store_dword {V(vR)}, {V(u[0])}, s[{rW}:{rW+3}], s{sT1} offen offset:32")
    a("L2_end:")
    a("s_endpgm")
    return name, max(R.hi, M.hi)
```

```python
from asmlib import *
from layout import *
from k1 import bf16_round

UPD = 81920
XCH = UPD + 9 * 256
K3_LDS = XCH + 6 * 4096
K3_GRID = 240

def gen_k3(a):
    name = "oproj_kernel"
    kernel_header(a, name)
    sX, sWO, sOut, sWS = 4, 6, 8, 10
    rX, rWO, rOut, rO, rW = 12, 16, 20, 24, 28
    sWave, sRow, sCol, sT0, sT1, sT2, sT3, sAny = 32, 33, 34, 35, 36, 37, 38, 39
    sSel = 40
    sKh, sTb, sC = 56, 57, 58
    vL = 1
    a(f"s_cmp_ge_u32 s2, {K3_GRID}")
    a("s_cbranch_scc1 L3_end")
    a(f"s_load_dwordx2 s[{sX}:{sX+1}], s[0:1], 0")
    a(f"s_load_dwordx2 s[{sWO}:{sWO+1}], s[0:1], 16")
    a(f"s_load_dwordx2 s[{sOut}:{sOut+1}], s[0:1], 64")
    a(f"s_load_dwordx2 s[{sWS}:{sWS+1}], s[0:1], 80")
    a("v_lshrrev_b32 v2, 6, v0")
    a(f"v_and_b32 {V(vL)}, 63, v0")
    a(f"v_readfirstlane_b32 s{sWave}, v2")
    a(f"s_lshr_b32 s{sT0}, s2, 3")
    a(f"s_mul_i32 s{sT1}, s{sT0}, 205")
    a(f"s_lshr_b32 s{sT1}, s{sT1}, 10")
    a(f"s_mul_i32 s{sT2}, s{sT1}, 5")
    a(f"s_sub_u32 s{sT0}, s{sT0}, s{sT2}")
    a(f"s_and_b32 s{sT2}, s2, 1")
    a(f"s_mul_i32 s{sT2}, s{sT2}, 5")
    a(f"s_add_u32 s{sCol}, s{sT0}, s{sT2}")
    a(f"s_bfe_u32 s{sT2}, s2, 0x20001")
    a(f"s_and_b32 s{sT3}, s{sT2}, 1")
    a(f"s_sub_u32 s{sT0}, 6, s{sT3}")
    a(f"s_cmp_ge_u32 s{sT1}, s{sT0}")
    a("s_cbranch_scc1 L3_end")
    a(f"s_mul_i32 s{sT2}, s{sT2}, 11")
    a(f"s_add_u32 s{sT2}, s{sT2}, 1")
    a(f"s_lshr_b32 s{sT2}, s{sT2}, 1")
    a(f"s_add_u32 s{sRow}, s{sT2}, s{sT1}")
    a(f"s_mul_i32 s{sRow}, s{sRow}, 96")
    R = Regs(2, 256)
    t = [R.alloc() for _ in range(6)]
    vN, vHi, vA0, vA1, vTok = [R.alloc() for _ in range(5)]
    vSt = R.alloc(2, 2)
    xr = R.alloc(8, 4)
    of = R.alloc(80, 4)
    wf = [R.alloc(8, 4) for _ in range(2)]
    acc = [R.alloc(16, 4) for _ in range(2)]
    xv = R.alloc(16, 4); xn = R.alloc(16, 4)
    a(f"v_lshrrev_b32 {V(t[0])}, 3, {V(vL)}")
    a(f"v_mul_u32_u24 {V(vN)}, {ROWB}, {V(t[0])}")
    a(f"v_bfe_u32 {V(t[1])}, {V(vL)}, 4, 1")
    a(f"v_lshlrev_b32 {V(t[1])}, 2, {V(t[1])}")
    a(f"v_and_b32 {V(t[2])}, 7, {V(vL)}")
    a(f"v_xor_b32 {V(t[1])}, {V(t[1])}, {V(t[2])}")
    a(f"v_lshl_add_u32 {V(vN)}, {V(t[1])}, 4, {V(vN)}")
    a(f"s_lshl_b32 s{sT0}, s{sCol}, 7")
    a(f"v_add_u32 {V(vN)}, s{sT0}, {V(vN)}")
    a(f"v_lshrrev_b32 {V(vHi)}, 5, {V(vL)}")
    a(f"v_lshlrev_b32 {V(t[5])}, 4, {V(vL)}")
    a("s_waitcnt lgkmcnt(0)")
    srd(a, rWO, sWO, WO_BYTES)
    srd(a, rO, sWS, O_BYTES, WS_O)
    srd(a, rX, sX, X_BYTES)
    srd(a, rW, sWS, WS_END)
    srd(a, rOut, sOut, X_BYTES)
    a(f"s_add_u32 s{sT0}, s{sWS}, {WS_SEL}")
    a(f"s_addc_u32 s{sT1}, s{sWS+1}, 0")
    a(f"s_mov_b32 s60, s{sT0}")
    a(f"s_mov_b32 s61, s{sT1}")
    a(f"s_load_dwordx16 s[{sSel}:{sSel+15}], s[60:61], 0")

    def wo_dma(cadd):
        a(f"s_add_u32 s{sT0}, s{sC}, {cadd}")
        a(f"s_lshl_b32 m0, s{sT0}, 10")
        a(f"s_mul_i32 s{sT1}, s{sT0}, 205")
        a(f"s_lshr_b32 s{sT1}, s{sT1}, 10")
        a(f"s_mul_i32 s{sT2}, s{sT1}, 5")
        a(f"s_sub_u32 s{sT0}, s{sT0}, s{sT2}")
        a(f"s_mul_i32 s{sT1}, s{sT1}, 40")
        a(f"s_lshl_b32 s{sT2}, s{sT0}, 3")
        a(f"s_lshr_b32 s{sT3}, s{sT0}, 1")
        a(f"s_lshl_b32 s{sT3}, s{sT3}, 2")
        a(f"s_add_u32 s{sT2}, s{sT2}, s{sT3}")
        a(f"s_cmp_eq_u32 s{sT0}, 4")
        a(f"s_cselect_b32 s{sT2}, 16, s{sT2}")
        a(f"s_cselect_b32 s{sT3}, {16*ROWB}, 0")
        a(f"s_add_u32 s{sT1}, s{sT1}, s{sT2}")
        a(f"s_mul_i32 s{sT1}, s{sT1}, {ROWB}")
        a(f"v_mad_u32_u24 {V(t[0])}, {V(vHi)}, s{sT3}, {V(vN)}")
        a(f"buffer_load_dwordx4 {V(t[0])}, s[{rWO}:{rWO+3}], s{sT1} offen lds")

    def any_sel():
        a(f"s_mov_b32 s{sAny}, 0")
        for k in range(8):
            a(f"s_sub_u32 s{sT0}, s{sSel+k}, s{sRow}")
            a(f"s_cmp_lt_u32 s{sT0}, 96")
            a(f"s_cselect_b32 s{sT0}, {1<<k}, 0")
            a(f"s_or_b32 s{sAny}, s{sAny}, s{sT0}")

    a(f"s_mov_b32 s{sC}, s{sWave}")
    a(f"s_cmp_ge_u32 s{sWave}, 6")
    a("s_cbranch_scc1 L3_helper")
    a(f"s_cmp_ge_u32 s{sWave}, 3")
    a(f"s_cselect_b32 s{sKh}, 1, 0")
    a(f"s_mul_i32 s{sT0}, s{sKh}, 3")
    a(f"s_sub_u32 s{sT0}, s{sWave}, s{sT0}")
    a(f"s_lshr_b32 s{sTb}, s{sRow}, 5")
    a(f"s_add_u32 s{sTb}, s{sTb}, s{sT0}")
    a(f"s_mul_i32 s62, s{sTb}, {O_TB}")
    a(f"s_mul_i32 s{sT0}, s{sKh}, 20480")
    a(f"s_add_u32 s62, s62, s{sT0}")
    for p in range(5):
        wo_dma(8 * p)
        wo_dma(40 + 8 * p)
        for s in range(4):
            a(f"buffer_load_dwordx4 {V(of+16*p+4*s,4)}, {V(t[5])}, s[{rO}:{rO+3}], s62 offen offset:{1024*s}")
        if p < 4: a("s_add_u32 s62, s62, 4096")
        if p == 0:
            a(f"v_and_b32 {V(vTok)}, 31, {V(vL)}")
            a(f"s_lshl_b32 s{sT0}, s{sTb}, 5")
            a(f"v_add_u32 {V(vTok)}, s{sT0}, {V(vTok)}")
            a(f"v_mul_u32_u24 {V(t[3])}, {ROWB}, {V(vTok)}")
            a(f"v_lshl_add_u32 {V(t[3])}, {V(vHi)}, 4, {V(t[3])}")
            a(f"s_lshl_b32 s{sT0}, s{sCol}, 7")
            a(f"s_lshl_b32 s{sT1}, s{sKh}, 6")
            a(f"s_add_u32 s63, s{sT0}, s{sT1}")
            a(f"v_lshlrev_b32 {V(t[4])}, 3, {V(vTok)}")
            a(f"s_mov_b32 s{sT0}, {WS_STAT}")
            a(f"buffer_load_dwordx4 {V(xr,4)}, {V(t[3])}, s[{rX}:{rX+3}], s63 offen")
            a(f"buffer_load_dwordx4 {V(xr+4,4)}, {V(t[3])}, s[{rX}:{rX+3}], s63 offen offset:32")
            a(f"buffer_load_dwordx2 {V(vSt,2)}, {V(t[4])}, s[{rW}:{rW+3}], s{sT0} offen")
    a(f"v_bfe_u32 {V(t[0])}, {V(vL)}, 2, 2")
    a(f"v_lshl_add_u32 {V(t[1])}, {V(vHi)}, 3, {V(t[0])}")
    a(f"v_lshlrev_b32 {V(t[1])}, 7, {V(t[1])}")
    a(f"v_lshrrev_b32 {V(t[0])}, 1, {V(t[0])}")
    a(f"v_xor_b32 {V(t[0])}, s{sKh}, {V(t[0])}")
    a(f"v_lshl_add_u32 {V(t[1])}, {V(t[0])}, 6, {V(t[1])}")
    a(f"v_bfe_u32 {V(t[0])}, {V(vL)}, 4, 1")
    a(f"v_lshl_add_u32 {V(t[1])}, {V(t[0])}, 5, {V(t[1])}")
    a(f"v_and_b32 {V(t[0])}, 3, {V(vL)}")
    a(f"v_lshl_add_u32 {V(t[1])}, {V(t[0])}, 3, {V(t[1])}")
    a(f"s_mul_i32 s{sT0}, s{sKh}, 40960")
    a(f"v_add_u32 {V(vA0)}, s{sT0}, {V(t[1])}")
    a(f"v_xor_b32 {V(vA1)}, 64, {V(vA0)}")
    a("s_waitcnt lgkmcnt(0)")
    any_sel()
    def reads(st, ks):
        for ti, va in enumerate((vA0, vA1)):
            for tt in range(2):
                a(f"ds_read_b64_tr_b16 {V(wf[st]+4*ti+2*tt,2)}, {V(va)} offset:{ks*2048+tt*512}")
    def mm(st, ks):
        for ti in range(2):
            c = "0" if ks == 0 else V(acc[ti], 16)
            a(f"v_mfma_f32_32x32x16_bf16 {V(acc[ti],16)}, {V(wf[st]+4*ti,4)}, {V(of+4*ks,4)}, {c}")
    def residual():
        a(f"v_permlane32_swap_b32 {V(xr)}, {V(xr+2)}")
        a(f"v_permlane32_swap_b32 {V(xr+1)}, {V(xr+3)}")
        a(f"v_permlane32_swap_b32 {V(xr+4)}, {V(xr+6)}")
        a(f"v_permlane32_swap_b32 {V(xr+5)}, {V(xr+7)}")
        a("s_nop 1")
        for i in range(8):
            a(f"v_lshlrev_b32 {V(xv+2*i)}, 16, {V(xr+i)}")
            a(f"v_and_b32 {V(xv+2*i+1)}, 0xffff0000, {V(xr+i)}")
        for i in range(16):
            a(f"v_sub_f32 {V(xn+i)}, {V(xv+i)}, {V(vSt)}")
        for rnd in range(2):
            for i in range(8):
                a(f"v_cvt_pk_bf16_f32 {V(xr+i)}, {V(xn+2*i)}, {V(xn+2*i+1)}")
            for i in range(8):
                a(f"v_lshlrev_b32 {V(xn+2*i)}, 16, {V(xr+i)}")
                a(f"v_and_b32 {V(xn+2*i+1)}, 0xffff0000, {V(xr+i)}")
            if rnd == 0:
                for i in range(16):
                    a(f"v_mul_f32 {V(xn+i)}, {V(vSt+1)}, {V(xn+i)}")
    total = 33
    for p in range(5):
        done = 6 * (p + 1) + (3 if p >= 1 else 0)
        if p == 0:
            a(f"s_waitcnt vmcnt({total-6})")
        else:
            a(f"s_waitcnt vmcnt({total-done})")
        a("s_barrier")
        reads(0, 4 * p)
        for s in range(4):
            ks = 4 * p + s
            if s < 3:
                reads((s + 1) % 2, ks + 1)
                a("s_waitcnt lgkmcnt(4)")
            else:
                a("s_waitcnt lgkmcnt(0)")
            mm(s % 2, ks)
        if p == 1: residual()
    a(f"s_lshl_b32 s{sT0}, s{sWave}, 12")
    a(f"s_add_u32 s{sT0}, s{sT0}, {XCH}")
    a(f"v_add_u32 {V(t[0])}, s{sT0}, {V(t[5])}")
    a(f"s_mul_i32 s{sT1}, s{sKh}, {(-6*4096) & 0xffffffff}")
    a(f"s_add_u32 s{sT0}, s{sT0}, s{sT1}")
    a(f"s_add_u32 s{sT0}, s{sT0}, {3*4096}")
    a(f"v_add_u32 {V(t[1])}, s{sT0}, {V(t[5])}")
    a("s_nop 6")
    for k in range(4):
        a(f"ds_write_b128 {V(t[0])}, {V(acc[1]+4*k,4)} offset:{1024*k}")
    a("s_waitcnt lgkmcnt(0)")
    a("s_barrier")
    for k in range(4):
        a(f"ds_read_b128 {V(of+4*k,4)}, {V(t[1])} offset:{1024*k}")
    a(f"s_cmp_eq_u32 s{sAny}, 0")
    a("s_cbranch_scc1 L3_noupd")
    a(f"v_mov_b32 {V(t[2])}, 8")
    for k in range(8):
        a(f"v_cmp_ne_u32 vcc, s{sSel+k}, {V(vTok)}")
        a("s_nop 1")
        a(f"v_cndmask_b32 {V(t[2])}, {k}, {V(t[2])}, vcc")
    a(f"v_lshlrev_b32 {V(t[2])}, 8, {V(t[2])}")
    a(f"v_lshl_add_u32 {V(t[2])}, {V(vHi)}, 4, {V(t[2])}")
    a(f"s_lshl_b32 s{sT0}, s{sKh}, 7")
    a(f"s_add_u32 s{sT0}, s{sT0}, {UPD}")
    a(f"v_add_u32 {V(t[2])}, s{sT0}, {V(t[2])}")
    for q in range(4):
        a(f"ds_read_b128 {V(of+16+4*q,4)}, {V(t[2])} offset:{32*q}")
    a("s_waitcnt lgkmcnt(0)")
    for i in range(16):
        a(f"v_add_f32 {V(xn+i)}, {V(xn+i)}, {V(of+16+i)}")
    for i in range(16):
        bf16_round(a, xn + i, xn + i)
    a("L3_noupd:")
    for i in range(16):
        a(f"v_add_f32 {V(xv+i)}, {V(xv+i)}, {V(xn+i)}")
    for i in range(16):
        a(f"v_add_f32 {V(xv+i)}, {V(xv+i)}, {V(acc[0]+i)}")
    a("s_waitcnt lgkmcnt(0)")
    for i in range(16):
        a(f"v_add_f32 {V(xv+i)}, {V(xv+i)}, {V(of+i)}")
    for i in range(8):
        a(f"v_cvt_pk_bf16_f32 {V(xr+i)}, {V(xv+2*i)}, {V(xv+2*i+1)}")
    a("s_nop 1")
    a(f"v_permlane32_swap_b32 {V(xr)}, {V(xr+2)}")
    a(f"v_permlane32_swap_b32 {V(xr+1)}, {V(xr+3)}")
    a(f"v_permlane32_swap_b32 {V(xr+4)}, {V(xr+6)}")
    a(f"v_permlane32_swap_b32 {V(xr+5)}, {V(xr+7)}")
    a(f"buffer_store_dwordx4 {V(xr,4)}, {V(t[3])}, s[{rOut}:{rOut+3}], s63 offen")
    a(f"buffer_store_dwordx4 {V(xr+4,4)}, {V(t[3])}, s[{rOut}:{rOut+3}], s63 offen offset:32")
    a("s_endpgm")

    a("L3_helper:")
    for p in range(5):
        wo_dma(8 * p)
        wo_dma(40 + 8 * p)
    a("s_waitcnt lgkmcnt(0)")
    any_sel()
    for p in range(5):
        a(f"s_waitcnt vmcnt({8-2*p})")
        a("s_barrier")
        if p == 0:
            a(f"s_cmp_eq_u32 s{sAny}, 0")
            a("s_cbranch_scc1 L3_h_rest")
    a(f"v_lshrrev_b32 {V(t[0])}, 4, {V(vL)}")
    a(f"v_mul_u32_u24 {V(t[0])}, 20480, {V(t[0])}")
    a(f"v_and_b32 {V(t[1])}, 15, {V(vL)}")
    a(f"v_lshlrev_b32 {V(t[1])}, 4, {V(t[1])}")
    a(f"v_add_u32 {V(t[0])}, {V(t[0])}, {V(t[1])}")
    a(f"v_add_u32 {V(t[2])}, {UPD+8*256}, {V(t[1])}")
    for i in range(4): a(f"v_mov_b32 {V(xr+i)}, 0")
    a(f"ds_write_b128 {V(t[2])}, {V(xr,4)}")
    ld = 20
    for k in range(8):
        lab = f"L3_h_skip{k}"
        a(f"s_and_b32 s{sT0}, s{sWave}, 1")
        a(f"s_cmp_lg_u32 s{sT0}, {k%2}")
        a(f"s_cbranch_scc1 {lab}")
        a(f"s_bitcmp0_b32 s{sAny}, {k}")
        a(f"s_cbranch_scc1 {lab}")
        a(f"s_mov_b32 s{sKh}, s{sSel+8+k}")
        a(f"s_mov_b32 s{sTb}, {k}")
        a("s_call_b64 s[62:63], L3_h_token")
        a(f"{lab}:")
    a("s_waitcnt lgkmcnt(0)")
    a("s_barrier")
    a("s_endpgm")
    a("L3_h_token:")
    a(f"s_mul_i32 s{sT0}, s{sTb}, 2560")
    a(f"s_lshl_b32 s{sT1}, s{sCol}, 8")
    a(f"s_add_u32 s{sT0}, s{sT0}, s{sT1}")
    a(f"s_add_u32 s{sT0}, s{sT0}, {WS_YP}")
    for i in range(NW // 4):
        a(f"buffer_load_dwordx4 {V(ld+4*i,4)}, {V(t[0])}, s[{rW}:{rW+3}], s{sT0} offen")
        a(f"s_add_u32 s{sT0}, s{sT0}, {4*20480}")
    a("s_waitcnt vmcnt(0)")
    for i in range(1, NW // 4):
        for r in range(4):
            a(f"v_add_f32 {V(ld+r)}, {V(ld+r)}, {V(ld+4*i+r)}")
    for op in ("v_permlane32_swap_b32", "v_permlane16_swap_b32"):
        for r in range(4): a(f"v_mov_b32 {V(ld+4+r)}, {V(ld+r)}")
        a("s_nop 1")
        for r in range(4): a(f"{op} {V(ld+4+r)}, {V(ld+r)}")
        a("s_nop 1")
        for r in range(4): a(f"v_add_f32 {V(ld+r)}, {V(ld+r)}, {V(ld+4+r)}")
    for r in range(4): bf16_round(a, ld + r, ld + r)
    for r in range(4): a(f"v_mul_f32 {V(ld+r)}, s{sKh}, {V(ld+r)}")
    for r in range(4): bf16_round(a, ld + r, ld + r)
    a(f"s_lshl_b32 s{sT0}, s{sTb}, 8")
    a(f"s_add_u32 s{sT0}, s{sT0}, {UPD}")
    a(f"v_add_u32 {V(t[2])}, s{sT0}, {V(t[1])}")
    a(f"ds_write_b128 {V(t[2])}, {V(ld,4)}")
    a("s_setpc_b64 s[62:63]")
    a("L3_h_rest:")
    for p in range(1, 5):
        a(f"s_waitcnt vmcnt({8-2*p})")
        a("s_barrier")
    a("L3_end:")
    a("s_endpgm")
    return name, max(R.hi, ld + NW)
```

```python
S_TOK = 2048; D = 640; H = 32; DH = 20; F = 1728
ROWB = D * 2
X_BYTES = S_TOK * ROWB
WQKV_ROWB = 3 * D * 2
WQKV_BYTES = D * WQKV_ROWB
WO_BYTES = D * ROWB
WG_ROWB = F * 2
WG_BYTES = D * WG_ROWB
WD_BYTES = F * ROWB
VG = 352
BLK = 1024 + 256 + 4 * VG
KV_HEAD = 64 * BLK
WS_KV = 0
KV_BYTES = H * KV_HEAD
QBLK = 1280
Q_HEAD = 64 * QBLK
WS_Q = WS_KV + KV_BYTES
Q_BYTES = H * Q_HEAD
O_TB = 80 * 512
WS_O = WS_Q + Q_BYTES
O_BYTES = 64 * O_TB
WS_STAT = WS_O + O_BYTES
STAT_BYTES = S_TOK * 8
WS_R = WS_STAT + STAT_BYTES
R_BYTES = S_TOK * 4
WS_CAND = WS_R + R_BYTES
CAND_BYTES = 512
WS_SEL = WS_CAND + CAND_BYTES
SEL_BYTES = 64
NW = 108
WS_YP = WS_SEL + 192
YP_BYTES = NW * 8 * D * 4
WS_DBG = WS_YP + YP_BYTES
WS_END = WS_DBG + 4 * 262144
QSCALE = DH ** -0.5 * 1.4426950408889634
import struct
def f32bits(x): return struct.unpack("<I", struct.pack("<f", x))[0]
if __name__ == "__main__":
    for k, v in list(globals().items()):
        if k.isupper(): print(k, v, hex(v) if isinstance(v, int) else "")
```

```python
import sys
from asmlib import *
from layout import *
import k1, k2, k3
HEADER = open("parallel_sum__softmax_full_mha__moe_arch_mod__prompt.s.ref").read().split("; Override launch")[0]
def build(extra_launch=""):
    a = Asm()
    n1, v1 = k1.gen_k1(a)
    n2, v2 = k2.gen_k2(a)
    n3, v3 = k3.gen_k3(a)
    out = HEADER
    out += f"; @launch kernel={n1} grid=(256,1,1) block=(512,1,1) lds={k1.K1_LDS}\n"
    out += f"; @launch kernel={n2} grid=({256+NW},1,1) block=(512,1,1) lds={k2.K2_LDS}\n"
    out += f"; @launch kernel={n3} grid=({k3.K3_GRID},1,1) block=(512,1,1) lds={k3.K3_LDS}\n"
    out += extra_launch
    out += '.amdgcn_target "amdgcn-amd-amdhsa--gfx950"\n.text\n'
    out += a.text()
    out += '.section .rodata,"a"\n'
    for n, v in ((n1, v1), (n2, v2), (n3, v3)):
        out += kernel_desc(n, v)
    print("vgprs", v1, v2, v3, file=sys.stderr)
    return out
if __name__ == "__main__":
    path = sys.argv[1] if len(sys.argv) > 1 else "parallel_sum__softmax_full_mha__moe_arch_mod__prompt.s"
    open(path, "w").write(build())
```

```python
class Asm:
    def __init__(self):
        self.lines = []
        self.uid = 0
    def __call__(self, s=""):
        for ln in s.split("\n"):
            ln = ln.strip()
            if not ln: continue
            if ln.endswith(":") or ln.startswith("."):
                self.lines.append(ln)
            else:
                self.lines.append("    " + ln)
    instr = False
    SB = 70
    KA = 0
    NK = 3
    DBGWG = 130
    PICKS = [[0,2,3,4,6,10],[0,3,4,5,10],[0,3,4,7,10],[]]
    def stamp(self, i):
        if not self.instr: return
        self(f"s_memrealtime s[{self.SB+2*i}:{self.SB+2*i+1}]")
    def stamp_cyc(self, i):
        if not self.instr: return
        self(f"s_memtime s[{self.SB+2*i}:{self.SB+2*i+1}]")
    def stamp_init(self):
        if not self.instr: return
        for i in range(2, 12): self(f"s_mov_b32 s{self.SB+2*i}, 0")
        self.stamp(0); self.stamp_cyc(1)
    def end(self, kidx, srd, swave, dbgoff):
        if self.instr == 2:
            lab = self.label("nodbg")
            self("s_waitcnt vmcnt(0) lgkmcnt(0)")
            self.stamp(10)
            self(f"s_load_dwordx2 s[{self.SB+2}:{self.SB+3}], s[{self.KA}:{self.KA+1}], 72")
            self(f"s_cmp_lg_u32 s{swave}, 0")
            self(f"s_cbranch_scc1 {lab}")
            self(f"s_cmp_lg_u32 s2, {self.DBGWG}")
            self(f"s_cbranch_scc1 {lab}")
            self("s_waitcnt lgkmcnt(0)")
            self("s_mov_b64 exec, -1")
            self("v_mov_b32 v2, 0")
            picks = self.PICKS[kidx]
            for i, p in enumerate(picks):
                self(f"v_writelane_b32 v2, s{self.SB+2*p}, {i}")
            off = sum(len(x) for x in self.PICKS[:kidx]) * 4
            self(f"s_add_u32 s{self.SB+2}, s{self.SB+2}, {512*(self.NK-1-kidx) + off}")
            self(f"s_addc_u32 s{self.SB+3}, s{self.SB+3}, 0")
            self("v_and_b32 v3, 63, v0")
            self("v_lshlrev_b32 v3, 2, v3")
            self(f"s_mov_b64 exec, {hex((1 << len(picks)) - 1)}")
            self(f"global_store_dword v3, v2, s[{self.SB+2}:{self.SB+3}]")
            self(f"{lab}:")
        elif self.instr:
            self("s_waitcnt vmcnt(0) lgkmcnt(0)")
            self.stamp(10); self.stamp_cyc(11)
            self("s_waitcnt lgkmcnt(0)")
            self("s_mov_b64 exec, -1")
            self("v_mov_b32 v2, 0")
            for i in range(12):
                self(f"v_writelane_b32 v2, s{self.SB+2*i}, {i}")
            self(f"s_lshl_b32 s{self.SB}, s2, 3")
            self(f"s_add_u32 s{self.SB}, s{self.SB}, s{swave}")
            self(f"s_lshl_b32 s{self.SB}, s{self.SB}, 6")
            self(f"s_add_u32 s{self.SB}, s{self.SB}, {dbgoff + kidx*262144}")
            self("v_and_b32 v3, 63, v0")
            self("v_lshlrev_b32 v3, 2, v3")
            self("s_mov_b64 exec, 0xffff")
            self(f"buffer_store_dword v2, v3, s[{srd}:{srd+3}], s{self.SB} offen")
        self("s_endpgm")
    def c(self, s):
        self.lines.append("    ; " + s)
    def label(self, base):
        self.uid += 1
        return f"L_{base}_{self.uid}"
    def text(self):
        return "\n".join(self.lines) + "\n"

def V(a, n=1):
    return f"v{a}" if n == 1 else f"v[{a}:{a+n-1}]"
def S(a, n=1):
    return f"s{a}" if n == 1 else f"s[{a}:{a+n-1}]"
def A(a, n=1):
    return f"a{a}" if n == 1 else f"a[{a}:{a+n-1}]"

class Regs:
    def __init__(self, start, limit):
        self.n = start; self.limit = limit; self.hi = start
    def alloc(self, cnt=1, align=1):
        if cnt >= 2 and align == 1: align = 2
        self.n = (self.n + align - 1) // align * align
        r = self.n; self.n += cnt
        assert self.n <= self.limit, f"out of registers ({self.n} > {self.limit})"
        self.hi = max(self.hi, self.n)
        return r
    def mark(self): return self.n
    def reset(self, m): self.n = m

def kernel_header(a, name):
    a(f".globl {name}")
    a(".p2align 8")
    a(f".type {name},@function")
    a(f"{name}:")

def kernel_desc(name, nvgpr, nsgpr=96, accum=None):
    accum = accum if accum is not None else (nvgpr + 3) // 4 * 4
    return f""".p2align 6
.amdhsa_kernel {name}
  .amdhsa_next_free_vgpr {nvgpr}
  .amdhsa_next_free_sgpr {nsgpr}
  .amdhsa_accum_offset {accum}
  .amdhsa_group_segment_fixed_size 0
  .amdhsa_kernarg_size 88
  .amdhsa_user_sgpr_count 2
  .amdhsa_user_sgpr_kernarg_segment_ptr 1
  .amdhsa_system_sgpr_workgroup_id_x 1
  .amdhsa_float_denorm_mode_32 3
.end_amdhsa_kernel
"""

def srd(a, s, base, nbytes, off=0):
    if off:
        a(f"s_add_u32 s{s}, s{base}, {off}")
        a(f"s_addc_u32 s{s+1}, s{base+1}, 0")
    else:
        a(f"s_mov_b32 s{s}, s{base}")
        a(f"s_mov_b32 s{s+1}, s{base+1}")
    a(f"s_mov_b32 s{s+2}, {nbytes}")
    a(f"s_mov_b32 s{s+3}, 0x20000")
```

```python
from asmlib import *
from layout import *

K1_LDS = 131072
NST = 10

def bf16_round(a, dst, src, tmp=None):
    a(f"v_cvt_pk_bf16_f32 {V(dst)}, {V(src)}, {V(src)}")
    a(f"v_and_b32 {V(dst)}, 0xffff0000, {V(dst)}")

def finalize_stats(a, vsum, vsq, vmean, vrs, t0, t1):
    inv = f32bits(1.0 / D)
    a(f"v_mul_f32 {V(t0)}, {hex(inv)}, {V(vsum)}")
    a(f"v_mul_f32 {V(t1)}, {hex(inv)}, {V(vsq)}")
    a(f"v_fma_f32 {V(t1)}, -{V(t0)}, {V(t0)}, {V(t1)}")
    a(f"v_max_f32 {V(t1)}, 0, {V(t1)}")
    bf16_round(a, vmean, t0)
    bf16_round(a, t1, t1)
    a(f"v_add_f32 {V(t1)}, {hex(f32bits(1e-5))}, {V(t1)}")
    bf16_round(a, t1, t1)
    a(f"v_sqrt_f32 {V(t1)}, {V(t1)}")
    a("s_nop 0")
    bf16_round(a, t1, t1)
    a(f"v_rcp_f32 {V(vrs)}, {V(t1)}")
    a("s_nop 0")

def half_sum(a, v, t):
    a(f"v_mov_b32 {V(t)}, {V(v)}")
    a("s_nop 1")
    a(f"v_permlane32_swap_b32 {V(t)}, {V(v)}")
    a("s_nop 1")
    a(f"v_add_f32 {V(v)}, {V(t)}, {V(v)}")

def top8_rounds(a, vk0, vk1, vt, sout, st, uniq):
    for rnd in range(8):
        a(f"v_max_u32 {V(vt)}, {V(vk0)}, {V(vk1)}")
        for sh in (8, 4, 2, 1):
            a("s_nop 1")
            a(f"v_max_u32_dpp {V(vt)}, {V(vt)}, {V(vt)} row_ror:{sh} row_mask:0xf bank_mask:0xf")
        a("s_nop 0")
        for i in range(4):
            a(f"v_readlane_b32 s{st+i}, {V(vt)}, {16*i}")
        a(f"s_max_u32 s{st}, s{st}, s{st+1}")
        a(f"s_max_u32 s{st+2}, s{st+2}, s{st+3}")
        a(f"s_max_u32 s{sout+rnd}, s{st}, s{st+2}")
        if rnd < 7:
            a(f"v_cmp_ne_u32 vcc, s{sout+rnd}, {V(vk0)}")
            a(f"v_cmp_ne_u32 s[{st}:{st+1}], s{sout+rnd}, {V(vk1)}")
            a("s_nop 1")
            a(f"v_cndmask_b32 {V(vk0)}, 0, {V(vk0)}, vcc")
            a(f"v_cndmask_b32 {V(vk1)}, 0, {V(vk1)}, s[{st}:{st+1}]")

def gen_k1(a):
    name = "qkv_kernel"
    kernel_header(a, name)
    sX, sW, sWS, sWR = 4, 6, 8, 10
    sWave, sRT, sCT, sPhi, sT0, sT1, sT2 = 12, 13, 14, 15, 16, 17, 18
    rX, rW, rO = 20, 24, 28
    sSlot, sCnt, sOnes, sQS, sBA, sBB = 32, 33, 34, 35, 36, 37
    sMx, sMw, sSx, sSw = 38, 39, 40, 41
    vL = 1
    a("s_cmp_ge_u32 s2, 256")
    a("s_cbranch_scc1 L1_end")
    a.stamp_init()
    END = lambda: a.end(0, rO, sWave, WS_DBG)
    a(f"s_load_dwordx4 s[{sX}:{sX+3}], s[0:1], 0")
    a(f"s_load_dwordx2 s[{sWS}:{sWS+1}], s[0:1], 80")
    a(f"s_load_dwordx2 s[{sWR}:{sWR+1}], s[0:1], 32")
    a(f"v_lshrrev_b32 v2, 6, v0")
    a(f"v_and_b32 {V(vL)}, 63, v0")
    a(f"v_readfirstlane_b32 s{sWave}, v2")
    a(f"s_lshr_b32 s{sT0}, s2, 3")
    a(f"s_and_b32 s{sT1}, s{sT0}, 3")
    a(f"s_lshr_b32 s{sT0}, s{sT0}, 2")
    a(f"s_bfe_u32 s{sRT}, s2, 0x20001")
    a(f"s_lshl_b32 s{sRT}, s{sRT}, 2")
    a(f"s_add_u32 s{sRT}, s{sRT}, s{sT1}")
    a(f"s_and_b32 s{sCT}, s2, 1")
    a(f"s_lshl_b32 s{sCT}, s{sCT}, 3")
    a(f"s_add_u32 s{sCT}, s{sCT}, s{sT0}")
    a(f"s_mul_i32 s{sT1}, s{sT1}, 5")
    a(f"s_lshr_b32 s{sT1}, s{sT1}, 1")
    a(f"s_add_u32 s{sPhi}, s{sT0}, s{sT1}")
    a(f"s_sub_u32 s{sT0}, s{sPhi}, 10")
    a(f"s_cmp_ge_u32 s{sPhi}, 10")
    a(f"s_cselect_b32 s{sPhi}, s{sT0}, s{sPhi}")
    a(f"s_mov_b32 s{sOnes}, 0x3f803f80")
    a("s_waitcnt lgkmcnt(0)")
    srd(a, rX, sX, X_BYTES)
    srd(a, rW, sW, WQKV_BYTES)
    srd(a, rO, sWS, WS_END)
    a(f"s_cmp_eq_u32 s{sCT}, 15")
    a("s_cbranch_scc1 L1_router")
    a(f"s_cmp_lt_u32 s{sWave}, 4")
    a("s_cbranch_scc1 L1_cons")
    a.c("loader waves")
    vX, vWd = 4, 8
    a(f"s_sub_u32 s{sT0}, s{sWave}, 4")
    a(f"s_lshl_b32 s{sMx}, s{sT0}, 12")
    a(f"s_lshl_b32 s{sT1}, s{sRT}, 2")
    a(f"s_add_u32 s{sT1}, s{sT1}, s{sT0}")
    a(f"s_mul_i32 s{sT1}, s{sT1}, {32*ROWB}")
    a(f"v_lshrrev_b32 v2, 3, {V(vL)}")
    a(f"v_mul_u32_u24 v2, {ROWB}, v2")
    a(f"v_lshrrev_b32 v3, 4, {V(vL)}")
    a(f"v_and_b32 v12, 7, {V(vL)}")
    a(f"v_xor_b32 v12, v12, v3")
    a(f"v_lshlrev_b32 v12, 4, v12")
    a(f"v_add3_u32 {V(vX)}, v2, v12, s{sT1}")
    a(f"v_xor_b32 {V(vX+1)}, 64, {V(vX)}")
    a(f"v_add_u32 {V(vX+2)}, {2*(8*ROWB-1024)}, {V(vX)}")
    a(f"v_add_u32 {V(vX+1)}, {8*ROWB-1024}, {V(vX+1)}")
    a(f"v_add_u32 {V(vX+3)}, {2*(8*ROWB-1024)}, {V(vX+1)}")
    a(f"s_mul_i32 s{sT1}, s{sT0}, {16*WQKV_ROWB}")
    a(f"s_lshl_b32 s{sT2}, s{sCT}, 8")
    a(f"s_add_u32 s{sT1}, s{sT1}, s{sT2}")
    a(f"v_mul_u32_u24 v2, {WQKV_ROWB}, v3")
    a(f"v_lshlrev_b32 v3, 2, v3")
    a(f"v_and_b32 v12, 15, {V(vL)}")
    a(f"v_xor_b32 v12, v12, v3")
    a(f"v_lshlrev_b32 v12, 4, v12")
    a(f"v_add3_u32 {V(vWd)}, v2, v12, s{sT1}")
    for q in range(1, 4):
        a(f"v_add_u32 {V(vWd+q)}, {q*(4*WQKV_ROWB-1024)}, {V(vWd)}")
    def issue():
        a(f"s_lshl_b32 s{sSx}, s{sPhi}, 7")
        a(f"s_mul_i32 s{sSw}, s{sPhi}, {64*WQKV_ROWB}")
        a(f"s_mov_b32 m0, s{sMx}")
        a(f"s_add_u32 s{sMw}, s{sMx}, 16384")
        for q in range(4):
            a(f"buffer_load_dwordx4 {V(vX+q)}, s[{rX}:{rX+3}], s{sSx} offen offset:{q*1024} lds")
        a(f"s_mov_b32 m0, s{sMw}")
        a(f"s_add_u32 s{sPhi}, s{sPhi}, 1")
        for q in range(4):
            a(f"buffer_load_dwordx4 {V(vWd+q)}, s[{rW}:{rW+3}], s{sSw} offen offset:{q*1024} lds")
        a(f"s_cmp_eq_u32 s{sPhi}, {NST}")
        a(f"s_cselect_b32 s{sPhi}, 0, s{sPhi}")
        a(f"s_add_u32 s{sMx}, s{sMx}, 32768")
        a(f"s_and_b32 s{sMx}, s{sMx}, 0x1ffff")
    a(f"s_mov_b32 s{sCnt}, 3")
    a.stamp(2)
    a("L1_ld_pro:")
    issue()
    a(f"s_sub_u32 s{sCnt}, s{sCnt}, 1")
    a(f"s_cmp_lg_u32 s{sCnt}, 0")
    a("s_cbranch_scc1 L1_ld_pro")
    a(f"s_mov_b32 s{sCnt}, {NST-3}")
    a.stamp(3)
    a("L1_ld_loop:")
    a("s_waitcnt vmcnt(16)")
    a("s_barrier")
    issue()
    a(f"s_sub_u32 s{sCnt}, s{sCnt}, 1")
    a(f"s_cmp_lg_u32 s{sCnt}, 0")
    a("s_cbranch_scc1 L1_ld_loop")
    for n in (16, 8, 0):
        a(f"s_waitcnt vmcnt({n})")
        a("s_barrier")
    END()
    a("L1_cons:")
    R = Regs(2, 256)
    t = [R.alloc() for _ in range(6)]
    vTok = R.alloc()
    xb = [[R.alloc() for s in range(4)] for xt in range(2)]
    wb = [R.alloc() for wt in range(2)]
    xa = [[R.alloc() for s in range(4)] for xt in range(2)]
    wa = [R.alloc() for wt in range(2)]
    vS, vQ, vC = R.alloc(), R.alloc(), R.alloc()
    oaddr = [[R.alloc() for q in range(4)] for wt in range(2)]
    fx = [[R.alloc(4, 4) for xt in range(2)] for st in range(2)]
    fw = [[R.alloc(4, 4) for wt in range(2)] for st in range(2)]
    acc = [[R.alloc(16, 4) for wt in range(2)] for xt in range(2)]
    ep = R.alloc(40, 4)
    sWi, sWj = 42, 43
    a(f"s_lshr_b32 s{sWi}, s{sWave}, 1")
    a(f"s_and_b32 s{sWj}, s{sWave}, 1")
    a(f"s_lshl_b32 s{sT0}, s{sRT}, 2")
    a(f"s_lshl_b32 s{sT1}, s{sWi}, 1")
    a(f"s_add_u32 s{sT0}, s{sT0}, s{sT1}")
    a(f"s_add_u32 s{sBA}, s{sT0}, s{sWj}")
    a(f"s_xor_b32 s{sBB}, s{sBA}, 1")
    for xt in range(2):
        for wt in range(2):
            for r in range(16):
                a(f"v_mov_b32 {V(acc[xt][wt]+r)}, 0")
    for r in (vS, vQ, vC):
        a(f"v_mov_b32 {V(r)}, 0")
    vH = t[0]
    a(f"v_lshrrev_b32 {V(vH)}, 5, {V(vL)}")
    a(f"v_bfe_u32 {V(t[1])}, {V(vL)}, 2, 2")
    a(f"v_bfe_u32 {V(t[2])}, {V(vL)}, 4, 1")
    a(f"v_bfe_u32 {V(t[3])}, {V(vL)}, 1, 1")
    a(f"v_lshl_add_u32 {V(t[2])}, {V(t[2])}, 1, {V(t[3])}")
    a(f"s_lshl_b32 s{sT0}, s{sWj}, 1")
    a(f"s_add_u32 s{sT0}, s{sT0}, s{sWi}")
    a(f"v_xor_b32 {V(t[3])}, s{sT0}, {V(t[1])}")
    a(f"v_lshl_add_u32 {V(t[2])}, {V(t[3])}, 2, {V(t[2])}")
    a(f"v_lshl_add_u32 {V(t[3])}, {V(vH)}, 3, {V(t[1])}")
    a(f"v_lshlrev_b32 {V(t[3])}, 8, {V(t[3])}")
    a(f"v_lshl_add_u32 {V(t[3])}, {V(t[2])}, 4, {V(t[3])}")
    a(f"v_and_b32 {V(t[2])}, 1, {V(vL)}")
    a(f"v_lshl_add_u32 {V(t[3])}, {V(t[2])}, 3, {V(t[3])}")
    a(f"v_add_u32 {V(wb[0])}, 16384, {V(t[3])}")
    a(f"v_xor_b32 {V(wb[1])}, 64, {V(wb[0])}")
    a(f"v_and_b32 {V(vTok)}, 31, {V(vL)}")
    a(f"s_cmp_ge_u32 s{sCT}, 10")
    a("s_cbranch_scc1 L1_consV")

    def xaddrs():
        a(f"s_lshl_b32 s{sT0}, s{sWi}, 13")
        a(f"s_lshl_b32 s{sT1}, s{sWj}, 12")
        a(f"s_add_u32 s{sT0}, s{sT0}, s{sT1}")
        a(f"v_lshlrev_b32 {V(t[1])}, 7, {V(vTok)}")
        a(f"v_add_u32 {V(t[1])}, s{sT0}, {V(t[1])}")
        a(f"v_bfe_u32 {V(t[2])}, {V(vTok)}, 1, 3")
        a(f"v_xor_b32 {V(t[2])}, {V(t[2])}, {V(vH)}")
        a(f"v_lshl_add_u32 {V(xb[0][0])}, {V(t[2])}, 4, {V(t[1])}")
        for s in range(1, 4):
            a(f"v_xor_b32 {V(xb[0][s])}, {32*s}, {V(xb[0][0])}")
        for s in range(4):
            a(f"v_xor_b32 {V(xb[1][s])}, 0x1000, {V(xb[0][s])}")

    def set_addrs():
        for xt in range(2):
            for s in range(4):
                a(f"v_add_u32 {V(xa[xt][s])}, s{sSlot}, {V(xb[xt][s])}")
        for wt in range(2):
            a(f"v_add_u32 {V(wa[wt])}, s{sSlot}, {V(wb[wt])}")

    def reads(st, s):
        for xt in range(2):
            a(f"ds_read_b128 {V(fx[st][xt],4)}, {V(xa[xt][s])}")
            a(f"ds_read_b64_tr_b16 {V(fw[st][xt],2)}, {V(wa[xt])} offset:{s*4096}")
            a(f"ds_read_b64_tr_b16 {V(fw[st][xt]+2,2)}, {V(wa[xt])} offset:{s*4096+1024}")

    def mm(st, isV):
        n = 0
        dots = []
        for r in range(4):
            dots.append(f"v_dot2c_f32_bf16 {V(vS)}, s{sOnes}, {V(fx[st][0]+r)}")
            dots.append(f"v_dot2c_f32_bf16 {V(vQ)}, {V(fx[st][0]+r)}, {V(fx[st][0]+r)}")
            dots.append(f"v_dot2c_f32_bf16 {V(vC)}, s{sOnes}, {V(fw[st][0]+r)}")
        for (xt, wt) in ((0, 0), (0, 1), (1, 0), (1, 1)):
            A_, B_ = (fx[st][xt], fw[st][wt]) if isV else (fw[st][wt], fx[st][xt])
            a(f"v_mfma_f32_32x32x16_bf16 {V(acc[xt][wt],16)}, {V(A_,4)}, {V(B_,4)}, {V(acc[xt][wt],16)}")
            for d in dots[3*n:3*n+3]: a(d)
            n += 1

    def mainloop(isV):
        lab = "V" if isV else "Q"
        a(f"s_mov_b32 s{sSlot}, 0")
        a(f"s_mov_b32 s{sCnt}, {NST}")
        set_addrs()
        a.stamp(2)
        a("s_barrier")
        a.stamp(3)
        reads(0, 0)
        a(f"L1_loop{lab}:")
        for s in range(3):
            reads((s+1) % 2, s+1)
            a("s_waitcnt lgkmcnt(6)")
            mm(s % 2, isV)
        a(f"s_add_u32 s{sSlot}, s{sSlot}, 32768")
        a(f"s_and_b32 s{sSlot}, s{sSlot}, 0x1ffff")
        a(f"s_sub_u32 s{sCnt}, s{sCnt}, 1")
        set_addrs()
        a(f"s_cmp_eq_u32 s{sCnt}, 0")
        a("s_waitcnt lgkmcnt(0)")
        a(f"s_cbranch_scc1 L1_last{lab}")
        a("s_barrier")
        reads(0, 0)
        mm(1, isV)
        a(f"s_branch L1_loop{lab}")
        a(f"L1_last{lab}:")
        a.stamp(4)
        mm(1, isV)
        a("s_nop 2")
        for v in (vS, vQ, vC):
            half_sum(a, v, t[1])
        finalize_stats(a, vS, vQ, vS, vQ, t[1], t[2])
        a(f"s_lshl_b32 s{sT0}, s{sWi}, 8")
        a(f"s_lshl_b32 s{sT1}, s{sWj}, 7")
        a(f"s_add_u32 s{sT2}, s{sT0}, s{sT1}")
        a(f"v_lshl_add_u32 {V(t[1])}, {V(vTok)}, 2, s{sT2}")
        a(f"ds_write_b32 {V(t[1])}, {V(vS)}")
        a(f"ds_write_b32 {V(t[1])}, {V(vQ)} offset:512")
        a(f"s_lshl_b32 s{sT0}, s{sWj}, 8")
        a(f"s_lshl_b32 s{sT1}, s{sWi}, 7")
        a(f"s_add_u32 s{sT0}, s{sT0}, s{sT1}")
        a(f"v_and_b32 {V(t[2])}, 31, {V(vL)}")
        a(f"v_lshl_add_u32 {V(t[2])}, {V(t[2])}, 2, s{sT0}")
        a(f"ds_write_b32 {V(t[2])}, {V(vC)} offset:1024")
        a("s_waitcnt lgkmcnt(0)")
        a("s_barrier")
        a.stamp(5)

    xaddrs()
    sHS, sBS, sBase = 44, 45, 46
    a(f"s_mov_b32 s{sHS}, {KV_HEAD}")
    a(f"s_mov_b32 s{sBS}, {BLK}")
    a(f"s_cmp_lt_u32 s{sCT}, 5")
    a(f"s_cmov_b32 s{sHS}, {Q_HEAD}")
    a(f"s_cmov_b32 s{sBS}, {QBLK}")
    a(f"s_cselect_b32 s{sBase}, {WS_Q}, {WS_KV}")
    a(f"s_cselect_b32 s{sQS}, {hex(f32bits(QSCALE))}, 1.0")
    a(f"s_cselect_b32 s{sT0}, 0, 5")
    a(f"s_sub_u32 s{sT0}, s{sCT}, s{sT0}")
    a(f"s_lshl_b32 s{sT0}, s{sT0}, 5")
    a(f"s_lshl_b32 s{sT1}, s{sWj}, 4")
    a(f"s_add_u32 s{sT0}, s{sT0}, s{sT1}")
    a(f"s_lshl_b32 s{sT1}, s{sWi}, 3")
    a(f"s_add_u32 s{sT0}, s{sT0}, s{sT1}")
    a(f"s_mul_i32 s{sBA}, s{sBA}, s{sBS}")
    a(f"s_mul_i32 s{sBB}, s{sBB}, s{sBS}")
    a(f"s_add_u32 s{sBA}, s{sBA}, s{sBase}")
    a(f"s_add_u32 s{sBB}, s{sBB}, s{sBase}")
    a(f"v_lshlrev_b32 {V(t[4])}, 4, {V(vTok)}")
    a(f"v_lshlrev_b32 {V(t[5])}, 3, {V(vTok)}")
    a(f"v_add_u32 {V(t[5])}, 1024, {V(t[5])}")
    for wt in range(2):
        if wt == 1: a(f"s_xor_b32 s{sT0}, s{sT0}, 8")
        for q in range(4):
            o = oaddr[wt][q]
            a(f"s_add_u32 s{sT1}, s{sT0}, {2*q}")
            a(f"v_add_u32 {V(t[1])}, s{sT1}, {V(vH)}")
            a(f"v_mul_u32_u24 {V(t[2])}, 205, {V(t[1])}")
            a(f"v_lshrrev_b32 {V(t[2])}, 10, {V(t[2])}")
            a(f"v_mad_i32_i24 {V(t[1])}, {V(t[2])}, -5, {V(t[1])}")
            a(f"v_lshrrev_b32 {V(t[3])}, 1, {V(t[1])}")
            a(f"v_lshl_add_u32 {V(t[3])}, {V(t[3])}, 9, {V(t[4])}")
            a(f"v_cmp_eq_u32 vcc, 4, {V(t[1])}")
            a(f"v_and_b32 {V(t[1])}, 1, {V(t[1])}")
            a(f"v_lshl_add_u32 {V(t[3])}, {V(t[1])}, 3, {V(t[3])}")
            a(f"v_cndmask_b32 {V(t[3])}, {V(t[3])}, {V(t[5])}, vcc")
            a(f"v_mad_u32_u24 {V(o)}, {V(t[2])}, s{sHS}, {V(t[3])}")
    mainloop(False)
    a(f"v_xor_b32 {V(t[3])}, 128, {V(t[1])}")
    a(f"ds_read_b32 {V(ep+32)}, {V(t[3])}")
    a(f"ds_read_b32 {V(ep+33)}, {V(t[3])} offset:512")
    a(f"v_lshl_add_u32 {V(t[2])}, {V(vH)}, 4, s{sT0}")
    a(f"v_xor_b32 {V(t[3])}, 128, {V(t[2])}")
    for wt in range(2):
        for q in range(4):
            a(f"ds_read_b128 {V(ep+16*wt+4*q,4)}, {V(t[2+wt])} offset:{1024+32*q}")
    a(f"v_mul_f32 {V(vQ)}, s{sQS}, {V(vQ)}")
    a("s_waitcnt lgkmcnt(8)")
    a(f"v_mul_f32 {V(ep+33)}, s{sQS}, {V(ep+33)}")
    a("s_waitcnt lgkmcnt(0)")
    for xt in range(2):
        vm, vr = (vS, vQ) if xt == 0 else (ep+32, ep+33)
        for wt in range(2):
            ac = acc[xt][wt]
            for r in range(16):
                a(f"v_fma_f32 {V(ac+r)}, -{V(vm)}, {V(ep+16*wt+r)}, {V(ac+r)}")
            for r in range(16):
                a(f"v_mul_f32 {V(ac+r)}, {V(vr)}, {V(ac+r)}")
            for r in range(8):
                a(f"v_cvt_pk_bf16_f32 {V(ac+r)}, {V(ac+2*r)}, {V(ac+2*r+1)}")
            for q in range(4):
                a(f"buffer_store_dwordx2 {V(ac+2*q,2)}, {V(oaddr[wt][q])}, s[{rO}:{rO+3}], s{sBA if xt==0 else sBB} offen")
    a.stamp(6)
    END()

    a("L1_consV:")
    a(f"v_bfe_u32 {V(t[1])}, {V(vTok)}, 2, 1")
    a(f"v_bfe_u32 {V(t[2])}, {V(vTok)}, 3, 1")
    a(f"v_and_b32 {V(vTok)}, 0x13, {V(vTok)}")
    a(f"v_lshl_add_u32 {V(vTok)}, {V(t[1])}, 3, {V(vTok)}")
    a(f"v_lshl_add_u32 {V(vTok)}, {V(t[2])}, 2, {V(vTok)}")
    xaddrs()
    a(f"s_sub_u32 s{sT0}, s{sCT}, 10")
    a(f"s_lshl_b32 s{sT0}, s{sT0}, 7")
    a(f"s_lshl_b32 s{sT1}, s{sWj}, 6")
    a(f"s_add_u32 s{sT0}, s{sT0}, s{sT1}")
    a(f"s_lshl_b32 s{sT1}, s{sWi}, 5")
    a(f"s_add_u32 s{sT0}, s{sT0}, s{sT1}")
    a(f"s_mul_i32 s{sBA}, s{sBA}, {BLK}")
    a(f"s_mul_i32 s{sBB}, s{sBB}, {BLK}")
    a(f"s_mov_b32 s{sT2}, {KV_HEAD}")
    a(f"v_and_b32 {V(t[4])}, 31, {V(vL)}")
    a(f"v_mul_u32_u24 {V(t[5])}, {VG}, {V(vH)}")
    a(f"v_add_u32 {V(t[5])}, {WS_KV+1280}, {V(t[5])}")
    for wt in range(2):
        if wt == 1: a(f"s_xor_b32 s{sT0}, s{sT0}, 32")
        a(f"v_add_u32 {V(t[1])}, s{sT0}, {V(t[4])}")
        a(f"v_mul_u32_u24 {V(t[2])}, 3277, {V(t[1])}")
        a(f"v_lshrrev_b32 {V(t[2])}, 16, {V(t[2])}")
        a(f"v_mul_u32_u24 {V(t[3])}, 20, {V(t[2])}")
        a(f"v_sub_u32 {V(t[1])}, {V(t[1])}, {V(t[3])}")
        a(f"v_lshl_add_u32 {V(t[1])}, {V(t[1])}, 4, {V(t[5])}")
        a(f"v_mad_u32_u24 {V(oaddr[wt][0])}, {V(t[2])}, s{sT2}, {V(t[1])}")
    mainloop(True)
    a(f"v_xor_b32 {V(t[3])}, 128, {V(t[2])}")
    a(f"ds_read_b32 {V(ep+32)}, {V(t[3])} offset:1024")
    a(f"v_lshl_add_u32 {V(t[1])}, {V(vH)}, 5, s{sT2}")
    for xt in range(2):
        if xt == 1: a(f"v_xor_b32 {V(t[1])}, 128, {V(t[1])}")
        for k in range(4):
            off = (k // 2) * 64 + (k % 2) * 16
            a(f"ds_read_b128 {V(ep+4*k,4)}, {V(t[1])} offset:{off}")
            a(f"ds_read_b128 {V(ep+16+4*k,4)}, {V(t[1])} offset:{512+off}")
        a("s_waitcnt lgkmcnt(0)")
        for wt in range(2):
            vc = vC if wt == 0 else ep+32
            ac = acc[xt][wt]
            for r in range(16):
                a(f"v_fma_f32 {V(ac+r)}, -{V(ep+r)}, {V(vc)}, {V(ac+r)}")
            for r in range(16):
                a(f"v_mul_f32 {V(ac+r)}, {V(ep+16+r)}, {V(ac+r)}")
            for r in range(8):
                a(f"v_cvt_pk_bf16_f32 {V(ac+r)}, {V(ac+2*r)}, {V(ac+2*r+1)}")
            for m in range(2):
                a(f"buffer_store_dwordx4 {V(ac+4*m,4)}, {V(oaddr[wt][0])}, s[{rO}:{rO+3}], s{sBA if xt==0 else sBB} offen offset:{m*2*VG}")
    a.stamp(6)
    END()

    a("L1_router:")
    srd(a, rW, sWR, ROWB)
    R2 = Regs(2, 256)
    u = [R2.alloc() for _ in range(8)]
    sm = [[R2.alloc() for k in range(3)] for g in range(4)]
    vSW = R2.alloc()
    wr = R2.alloc(20, 4)
    xg = [R2.alloc(20, 4) for g in range(4)]
    cz = R2.alloc(8, 4)
    a(f"s_lshl_b32 s{sT0}, s{sRT}, 3")
    a(f"s_add_u32 s{sT0}, s{sT0}, s{sWave}")
    a(f"s_lshl_b32 s{sT0}, s{sT0}, 4")
    a(f"v_lshrrev_b32 {V(u[0])}, 4, {V(vL)}")
    a(f"v_and_b32 {V(u[1])}, 15, {V(vL)}")
    a(f"v_add_u32 {V(u[2])}, s{sT0}, {V(u[0])}")
    a(f"v_mul_u32_u24 {V(u[2])}, {ROWB}, {V(u[2])}")
    a(f"v_lshlrev_b32 {V(u[3])}, 4, {V(u[1])}")
    a(f"v_add_u32 {V(u[2])}, {V(u[2])}, {V(u[3])}")
    for i in range(5):
        a(f"buffer_load_dwordx4 {V(wr+4*i,4)}, {V(u[3])}, s[{rW}:{rW+3}], 0 offen offset:{256*i}")
    for g in range(4):
        a(f"s_mov_b32 s{sT1}, {4*g*ROWB}")
        for i in range(5):
            a(f"buffer_load_dwordx4 {V(xg[g]+4*i,4)}, {V(u[2])}, s[{rX}:{rX+3}], s{sT1} offen offset:{256*i}")
    a(f"v_lshrrev_b32 {V(u[4])}, 4, v0")
    a(f"s_mov_b32 s{sT1}, {KV_HEAD}")
    a(f"v_mul_lo_u32 {V(u[4])}, {V(u[4])}, s{sT1}")
    a(f"v_bfe_u32 {V(u[5])}, v0, 2, 2")
    a(f"v_mul_u32_u24 {V(u[5])}, {BLK}, {V(u[5])}")
    a(f"v_and_b32 {V(u[6])}, 3, v0")
    a(f"v_mul_u32_u24 {V(u[6])}, {VG}, {V(u[6])}")
    a(f"v_add3_u32 {V(u[4])}, {V(u[4])}, {V(u[5])}, {V(u[6])}")
    a(f"s_mul_i32 s{sT1}, s{sRT}, {4*BLK}")
    a(f"s_add_u32 s{sT1}, s{sT1}, {WS_KV+1280+320}")
    for i in range(4):
        a(f"v_mov_b32 {V(cz+i)}, s{sOnes}")
        a(f"v_mov_b32 {V(cz+4+i)}, 0")
    a(f"buffer_store_dwordx4 {V(cz,4)}, {V(u[4])}, s[{rO}:{rO+3}], s{sT1} offen")
    a(f"buffer_store_dwordx4 {V(cz+4,4)}, {V(u[4])}, s[{rO}:{rO+3}], s{sT1} offen offset:16")
    a(f"v_mov_b32 {V(vSW)}, 0")
    for g in range(4):
        for k in range(3): a(f"v_mov_b32 {V(sm[g][k])}, 0")
    a("s_waitcnt vmcnt(22)")
    for r in range(20):
        a(f"v_dot2c_f32_bf16 {V(vSW)}, s{sOnes}, {V(wr+r)}")
    for g in range(4):
        a(f"s_waitcnt vmcnt({17-5*g})")
        for r in range(20):
            a(f"v_dot2c_f32_bf16 {V(sm[g][0])}, s{sOnes}, {V(xg[g]+r)}")
            a(f"v_dot2c_f32_bf16 {V(sm[g][1])}, {V(xg[g]+r)}, {V(xg[g]+r)}")
            a(f"v_dot2c_f32_bf16 {V(sm[g][2])}, {V(wr+r)}, {V(xg[g]+r)}")
    a("s_nop 2")
    allv = [vSW] + [sm[g][k] for g in range(4) for k in range(3)]
    for sh in (8, 4, 2, 1):
        for v in allv:
            a(f"v_add_f32_dpp {V(v)}, {V(v)}, {V(v)} row_ror:{sh} row_mask:0xf bank_mask:0xf")
    for g in range(1, 4):
        a(f"v_cmp_eq_u32 vcc, {g}, {V(u[1])}")
        a("s_nop 1")
        for k in range(3):
            a(f"v_cndmask_b32 {V(sm[0][k])}, {V(sm[0][k])}, {V(sm[g][k])}, vcc")
    mS, mQ, mR = sm[0]
    m2 = sm[1][0]
    pair = cz
    a("s_waitcnt vmcnt(0)")
    finalize_stats(a, mS, mQ, pair, pair+1, u[4], u[5])
    a(f"v_fma_f32 {V(mR)}, -{V(pair)}, {V(vSW)}, {V(mR)}")
    a(f"v_mul_f32 {V(mR)}, {V(pair+1)}, {V(mR)}")
    a(f"v_lshl_add_u32 {V(u[4])}, {V(u[1])}, 2, {V(u[0])}")
    a(f"v_add_u32 {V(u[5])}, s{sT0}, {V(u[4])}")
    a(f"v_ashrrev_i32 {V(u[6])}, 31, {V(mR)}")
    a(f"v_or_b32 {V(u[6])}, 0x80000000, {V(u[6])}")
    a(f"v_xor_b32 {V(u[6])}, {V(u[6])}, {V(mR)}")
    a(f"v_and_b32 {V(u[6])}, 0xfffff800, {V(u[6])}")
    a(f"v_sub_u32 {V(u[7])}, 2047, {V(u[5])}")
    a(f"v_or_b32 {V(u[6])}, {V(u[6])}, {V(u[7])}")
    a(f"s_lshl_b32 s{sT1}, s{sWave}, 6")
    a(f"v_lshl_add_u32 {V(u[4])}, {V(u[4])}, 2, s{sT1}")
    a(f"v_lshlrev_b32 {V(u[7])}, 3, {V(u[5])}")
    a(f"v_lshlrev_b32 {V(u[5])}, 2, {V(u[5])}")
    a(f"s_mov_b32 s{sT1}, {WS_STAT}")
    a(f"s_mov_b32 s{sT2}, {WS_R}")
    a(f"v_cmp_gt_u32 vcc, 4, {V(u[1])}")
    a("s_and_saveexec_b64 s[44:45], vcc")
    a(f"ds_write_b32 {V(u[4])}, {V(u[6])}")
    a(f"buffer_store_dwordx2 {V(pair,2)}, {V(u[7])}, s[{rO}:{rO+3}], s{sT1} offen")
    a(f"buffer_store_dword {V(mR)}, {V(u[5])}, s[{rO}:{rO+3}], s{sT2} offen")
    a("s_mov_b64 exec, s[44:45]")
    a("s_waitcnt lgkmcnt(0)")
    a("s_barrier")
    a(f"s_cmp_lg_u32 s{sWave}, 0")
    a("s_cbranch_scc1 L1_end")
    a(f"v_lshlrev_b32 {V(u[0])}, 3, {V(vL)}")
    a(f"ds_read_b64 {V(cz,2)}, {V(u[0])}")
    a("s_waitcnt lgkmcnt(0)")
    top8_rounds(a, cz, cz+1, u[1], 48, 44, "r")
    for i in range(8):
        a(f"v_writelane_b32 {V(u[2])}, s{48+i}, {i}")
    a(f"s_lshl_b32 s{sT1}, s{sRT}, 5")
    a(f"s_add_u32 s{sT1}, s{sT1}, {WS_CAND}")
    a(f"v_lshlrev_b32 {V(u[0])}, 2, {V(vL)}")
    a(f"s_mov_b64 exec, 0xff")
    a(f"buffer_store_dword {V(u[2])}, {V(u[0])}, s[{rO}:{rO+3}], s{sT1} offen")
    END()
    a("L1_end:")
    a("s_endpgm")
    return name, max(R.hi, R2.hi)
```

```python
from asmlib import *
from layout import *
from k1 import top8_rounds, bf16_round

K2_LDS = 81920
TILE = 8 * BLK
XCH7 = 3 * TILE
FLAGS = XCH7 + 3072

def gen_k2(a):
    name = "attn_kernel"
    kernel_header(a, name)
    sWS = 4
    rKV, rQ = 8, 12
    sWave, sHead, sQb, sT0, sT1, sT2 = 16, 17, 18, 19, 20, 21
    sTile, sM0, sM0b, sCnt, sDelta, sSlot, sPass, sTb = 22, 23, 24, 25, 26, 27, 28, 29
    sHi = 30
    sSo = 32
    vL = 1
    a(f"s_cmp_ge_u32 s2, {256+NW}")
    a("s_cbranch_scc1 L2_end")
    a.stamp_init()
    END = lambda: a.end(1, rQ, sWave, WS_DBG)
    a(f"s_load_dwordx2 s[{sWS}:{sWS+1}], s[0:1], 80")
    a("v_lshrrev_b32 v2, 6, v0")
    a(f"v_and_b32 {V(vL)}, 63, v0")
    a(f"v_readfirstlane_b32 s{sWave}, v2")
    a("s_cmp_ge_u32 s2, 256")
    a("s_cbranch_scc1 L2_moe")
    a("s_setprio 1")
    R = Regs(2, 128)
    t = [R.alloc() for _ in range(4)]
    vDma, vKa, vKb, vV, vIdx = [R.alloc() for _ in range(5)]
    Qa = [R.alloc(4, 4) for _ in range(2)]
    Qb = [R.alloc(2, 2) for _ in range(2)]
    Ka = R.alloc(4, 4); Kb = R.alloc(2, 2)
    Va = [R.alloc(4, 4) for _ in range(2)]
    Vb = [R.alloc(4, 4) for _ in range(2)]
    O = [R.alloc(16, 4) for _ in range(2)]
    Sx = [R.alloc(16, 4) for _ in range(2)]
    a(f"s_lshr_b32 s{sT0}, s2, 3")
    a(f"s_and_b32 s{sHead}, s2, 7")
    a(f"s_lshl_b32 s{sHead}, s{sHead}, 2")
    a(f"s_and_b32 s{sT1}, s{sT0}, 3")
    a(f"s_add_u32 s{sHead}, s{sHead}, s{sT1}")
    a(f"s_lshr_b32 s{sQb}, s{sT0}, 2")
    a(f"s_min_u32 s{sT0}, s{sWave}, 6")
    a(f"s_mul_i32 s{sM0b}, s{sT0}, 3072")
    a(f"s_mul_i32 s{sT1}, s{sHead}, {KV_HEAD}")
    a(f"s_add_u32 s{sT1}, s{sT1}, s{sM0b}")
    a(f"v_lshlrev_b32 {V(t[0])}, 4, {V(vL)}")
    a(f"v_add_u32 {V(vDma)}, s{sT1}, {V(t[0])}")
    a(f"s_and_b32 s{sT0}, s{sWave}, 3")
    a(f"s_lshl_b32 s{sT0}, s{sT0}, 1")
    a(f"s_lshr_b32 s{sT1}, s{sWave}, 2")
    a(f"s_add_u32 s{sT0}, s{sT0}, s{sT1}")
    a(f"s_lshl_b32 s{sTb}, s{sQb}, 3")
    a(f"s_add_u32 s{sTb}, s{sTb}, s{sT0}")
    a(f"s_mul_i32 s{sT2}, s{sT1}, {4*BLK}")
    a(f"s_mov_b32 s{sPass}, 0")
    a(f"s_mov_b32 s{sSo+1}, {TILE}")
    a(f"s_mov_b32 s{sHi}, 0")
    a(f"s_mov_b32 s{sHi+1}, -1")
    a("s_waitcnt lgkmcnt(0)")
    srd(a, rKV, sWS, KV_BYTES, WS_KV)
    srd(a, rQ, sWS, WS_END)

    def dma(next_slot=True):
        a(f"s_mul_i32 s{sSo}, s{sTile}, {TILE}")
        a(f"s_mov_b32 m0, s{sM0}")
        a(f"s_add_u32 s{sTile}, s{sTile}, 1")
        a(f"s_and_b32 s{sTile}, s{sTile}, 7")
        for i in range(3):
            a(f"buffer_load_dwordx4 {V(vDma)}, s[{rKV}:{rKV+3}], s{sSo} offen offset:{1024*i} lds")
    a(f"s_mul_i32 s{sT0}, s{sHead}, {Q_HEAD}")
    a(f"s_add_u32 s{sT0}, s{sT0}, {WS_Q}")
    a(f"s_mul_i32 s{sT1}, s{sTb}, {QBLK}")
    a(f"s_add_u32 s{sSo}, s{sT0}, s{sT1}")
    a(f"s_xor_b32 s{sT1}, s{sTb}, 1")
    a(f"s_mul_i32 s{sT1}, s{sT1}, {QBLK}")
    a(f"s_add_u32 s{sT1}, s{sT0}, s{sT1}")
    a(f"v_and_b32 {V(t[1])}, 31, {V(vL)}")
    a(f"v_lshlrev_b32 {V(t[2])}, 3, {V(t[1])}")
    a(f"buffer_load_dwordx4 {V(Qa[0],4)}, {V(t[0])}, s[{rQ}:{rQ+3}], s{sSo} offen")
    a(f"buffer_load_dwordx2 {V(Qb[0],2)}, {V(t[2])}, s[{rQ}:{rQ+3}], s{sSo} offen offset:1024")
    a(f"buffer_load_dwordx4 {V(Qa[1],4)}, {V(t[0])}, s[{rQ}:{rQ+3}], s{sT1} offen")
    a(f"buffer_load_dwordx2 {V(Qb[1],2)}, {V(t[2])}, s[{rQ}:{rQ+3}], s{sT1} offen offset:1024")
    a("L2_start:")
    a(f"s_mov_b32 s{sTile}, s{sQb}")
    a(f"s_mov_b32 s{sM0}, s{sM0b}")
    dma()
    a(f"s_add_u32 s{sM0}, s{sM0b}, {TILE}")
    dma()
    a(f"s_add_u32 s{sM0}, s{sM0b}, {2*TILE}")
    a(f"v_lshlrev_b32 {V(vKa)}, 4, {V(vL)}")
    a(f"v_and_b32 {V(t[1])}, 31, {V(vL)}")
    a(f"v_lshlrev_b32 {V(vKb)}, 3, {V(t[1])}")
    a(f"v_add_u32 {V(vKb)}, 1024, {V(vKb)}")
    a(f"v_mov_b32 {V(t[2])}, {1280+320}")
    a(f"v_cndmask_b32 {V(vKb)}, {V(vKb)}, {V(t[2])}, s[{sHi}:{sHi+1}]")
    a(f"v_min_u32 {V(t[1])}, 21, {V(t[1])}")
    a(f"v_lshlrev_b32 {V(t[1])}, 4, {V(t[1])}")
    a(f"v_lshrrev_b32 {V(t[2])}, 5, {V(vL)}")
    a(f"v_mul_u32_u24 {V(t[2])}, {VG}, {V(t[2])}")
    a(f"v_add3_u32 {V(vV)}, {V(t[1])}, {V(t[2])}, s{sT2}")
    a(f"v_add_u32 {V(vV)}, 1280, {V(vV)}")
    a(f"v_mov_b32 {V(vIdx)}, 0xdddddddd")
    for x in range(2):
        for r in range(16): a(f"v_mov_b32 {V(O[x]+r)}, 0")
    for r in range(8, 16): a(f"v_mov_b32 {V(Sx[1]+r)}, 0")
    for r in range(4): a(f"v_mov_b32 {V(Vb[1]+r)}, 0")

    def ex(r): a(f"v_exp_f32 {V(r)}, {V(r)}")
    def qk1(x): a(f"v_mfma_f32_32x32x16_bf16 {V(Sx[x],16)}, {V(Ka,4)}, {V(Qa[x],4)}, 0")
    def qk2(x): a(f"v_mfma_f32_32x32x8_bf16 {V(Sx[x],16)}, {V(Kb,2)}, {V(Qb[x],2)}, {V(Sx[x],16)}")
    def pv(x, vf, half): a(f"v_smfmac_f32_32x32x32_bf16 {V(O[x],16)}, {V(vf,4)}, {V(Sx[x]+8*half,8)}, {V(vIdx)}")
    def rdK(off):
        a(f"ds_read_b128 {V(Ka,4)}, {V(vKa)} offset:{off}")
        a(f"ds_read_b64 {V(Kb,2)}, {V(vKb)} offset:{off}")
    def rdV(buf, off):
        a(f"ds_read_b128 {V(Va[buf],4)}, {V(vV)} offset:{off}")
        a(f"ds_read_b128 {V(Vb[buf],4)}, {V(vV)} offset:{off+2*VG}")
    def rowmax(x, dst, first):
        s = Sx[x]
        if first:
            a(f"v_max3_f32 {V(dst)}, {V(s)}, {V(s+1)}, {V(s+2)}")
            rest = list(range(3, 16))
        else:
            rest = list(range(16))
        while len(rest) >= 2:
            a(f"v_max3_f32 {V(dst)}, {V(dst)}, {V(s+rest[0])}, {V(s+rest[1])}")
            rest = rest[2:]
        if rest: a(f"v_max_f32 {V(dst)}, {V(dst)}, {V(s+rest[0])}")
    def set_negmax(x, m):
        u, w = t[2], t[3]
        a(f"v_mov_b32 {V(u)}, {V(m)}")
        a("s_nop 1")
        a(f"v_permlane32_swap_b32 {V(u)}, {V(m)}")
        a("s_nop 1")
        a(f"v_max_f32 {V(m)}, {V(u)}, {V(m)}")
        a(f"v_sub_f32 {V(m)}, 0, {V(m)}")
        bf16_round(a, u, m)
        a(f"v_sub_f32 {V(m)}, {V(m)}, {V(u)}")
        bf16_round(a, w, m)
        a(f"v_sub_f32 {V(m)}, {V(m)}, {V(w)}")
        a(f"v_cvt_pk_bf16_f32 {V(u)}, {V(u)}, {V(w)}")
        a(f"v_cvt_pk_bf16_f32 {V(w)}, {V(m)}, 0")
        a(f"v_cndmask_b32 {V(Qb[x])}, {V(Qb[x])}, {V(u)}, s[{sHi}:{sHi+1}]")
        a(f"v_cndmask_b32 {V(Qb[x]+1)}, {V(Qb[x]+1)}, {V(w)}, s[{sHi}:{sHi+1}]")

    a.stamp(2)
    a("s_waitcnt vmcnt(3)")
    a("s_barrier")
    a.stamp(3)
    a(f"s_cmp_lg_u32 s{sPass}, 0")
    a("s_cbranch_scc1 L2_havemax")
    rdK(0)
    for x in range(2):
        for r in range(2):
            a(f"v_cndmask_b32 {V(Qb[x]+r)}, {V(Qb[x]+r)}, 0, s[{sHi}:{sHi+1}]")
    a("s_waitcnt lgkmcnt(0)")
    qk1(0); qk2(0)
    a(f"v_mfma_f32_32x32x16_bf16 {V(O[1],16)}, {V(Ka,4)}, {V(Qa[1],4)}, 0")
    a(f"v_mfma_f32_32x32x8_bf16 {V(O[1],16)}, {V(Kb,2)}, {V(Qb[1],2)}, {V(O[1],16)}")
    a("s_nop 7")
    rowmax(0, t[0], True)
    set_negmax(0, t[0])
    sv = Sx[1]; Sx[1] = O[1]
    rowmax(1, t[0], True)
    Sx[1] = sv
    set_negmax(1, t[0])
    for r in range(16): a(f"v_mov_b32 {V(O[1]+r)}, 0")
    a("L2_havemax:")
    a(f"v_add_u32 {V(vKa)}, s{sT2}, {V(vKa)}")
    a(f"v_add_u32 {V(vKb)}, s{sT2}, {V(vKb)}")
    rdK(0)
    rdV(0, 0)
    a(f"s_mov_b32 s{sCnt}, 8")
    a(f"s_mov_b32 s{sSlot}, 0")
    a("s_waitcnt lgkmcnt(2)")
    qk1(0); qk2(0)
    a("s_waitcnt lgkmcnt(0)")
    a("s_nop 7")
    a.stamp(4)
    a(".p2align 6")
    a("L2_loop:")
    for n in range(4):
        cur, nxt = n % 2, (n + 1) % 2
        off = (n + 1) * BLK if n < 3 else 0
        Sa, Sb = Sx
        ex(Sa); ex(Sa + 1)
        pv(1, Vb[nxt], 1)
        if n == 3:
            a(f"s_add_u32 s{sSlot}, s{sSlot}, 1")
            a(f"s_cmp_eq_u32 s{sSlot}, 3")
            a(f"s_cselect_b32 s{sDelta}, {(-2*TILE) & 0xffffffff}, s{sSo+1}")
            a(f"s_cselect_b32 s{sSlot}, 0, s{sSlot}")
            a(f"v_add_u32 {V(vV)}, s{sDelta}, {V(vV)}")
            a(f"v_add_u32 {V(vKa)}, s{sDelta}, {V(vKa)}")
            a(f"v_add_u32 {V(vKb)}, s{sDelta}, {V(vKb)}")
            a(f"s_sub_u32 s{sCnt}, s{sCnt}, 1")
            a(f"s_cmp_lt_u32 s{sCnt}, 2")
            a("s_waitcnt vmcnt(0)")
            a("s_barrier")
            a("s_cbranch_scc1 L2_nodma")
            dma()
            a(f"s_add_u32 s{sM0}, s{sM0}, {TILE}")
            a(f"s_sub_u32 s{sT0}, s{sM0}, {3*TILE}")
            a(f"s_cmp_ge_u32 s{sM0}, {3*TILE}")
            a(f"s_cselect_b32 s{sM0}, s{sT0}, s{sM0}")
            a("L2_nodma:")
        rdV(nxt, off)
        for i in range(2, 6): ex(Sa + i)
        qk1(1)
        for i in range(6, 10): ex(Sa + i)
        qk2(1)
        rdK(off)
        for i in range(10, 14): ex(Sa + i)
        pv(0, Va[cur], 0)
        for i in range(14, 16): ex(Sa + i)
        ex(Sb); ex(Sb + 1)
        pv(0, Vb[cur], 1)
        for i in range(2, 6): ex(Sb + i)
        a("s_waitcnt lgkmcnt(0)")
        qk1(0)
        for i in range(6, 10): ex(Sb + i)
        qk2(0)
        for i in range(10, 14): ex(Sb + i)
        pv(1, Va[cur], 0)
        for i in range(14, 16): ex(Sb + i)
    a(f"s_cmp_lg_u32 s{sCnt}, 0")
    a("s_cbranch_scc1 L2_loop")
    a.stamp(5)
    a("s_nop 1")
    pv(1, Vb[1], 1)
    a(f"s_mul_i32 s{sT0}, s{sWave}, 3072")
    a(f"s_cmp_eq_u32 s{sWave}, 7")
    a(f"s_cselect_b32 s{sT0}, {XCH7}, s{sT0}")
    a(f"s_xor_b32 s{sT1}, s{sWave}, 4")
    a(f"s_mul_i32 s{sSo}, s{sT1}, 3072")
    a(f"s_cmp_eq_u32 s{sT1}, 7")
    a(f"s_cselect_b32 s{sT1}, {XCH7}, s{sSo}")
    a(f"v_lshlrev_b32 {V(vKa)}, 4, {V(vL)}")
    a(f"v_add_u32 {V(vKb)}, s{sT0}, {V(vKa)}")
    a(f"v_add_u32 {V(vV)}, s{sT1}, {V(vKa)}")
    a(f"v_mov_b32 {V(t[0])}, 0")
    a(f"s_mov_b32 s{sT0}, {hex(f32bits(2.0**-27))}")
    for r in range(12):
        a(f"v_fma_f32 {V(t[0])}, |{V(O[0]+r)}|, s{sT0}, {V(t[0])}")
    for r in range(12):
        a(f"v_fma_f32 {V(t[0])}, |{V(O[1]+r)}|, s{sT0}, {V(t[0])}")
    for k in range(3):
        a(f"ds_write_b128 {V(vKb)}, {V(O[1]+4*k,4)} offset:{1024*k}")
    a(f"s_mov_b32 s{sT0}, {hex(f32bits(2.0**73))}")
    a(f"v_cmp_nle_f32 vcc, {V(t[0])}, s{sT0}")
    a(f"s_lshl_b32 s{sT1}, s{sWave}, 2")
    a(f"s_add_u32 s{sT1}, s{sT1}, {FLAGS}")
    a(f"v_mov_b32 {V(t[1])}, s{sT1}")
    a(f"s_or_b32 s{sT0}, vcc_lo, vcc_hi")
    a(f"v_mov_b32 {V(t[2])}, s{sT0}")
    a(f"ds_write_b32 {V(t[1])}, {V(t[2])}")
    a(f"v_mov_b32 {V(t[1])}, {FLAGS}")
    a("s_waitcnt lgkmcnt(0)")
    a("s_barrier")
    a.stamp(6)
    a(f"ds_read_b128 {V(Va[0],4)}, {V(t[1])}")
    a(f"ds_read_b128 {V(Va[1],4)}, {V(t[1])} offset:16")
    for k in range(3):
        a(f"ds_read_b128 {V(Sx[0]+4*k,4)}, {V(vV)} offset:{1024*k}")
    a(f"s_lshr_b32 s{sT0}, s{sHead}, 1")
    a(f"s_mul_i32 s{sT0}, s{sT0}, {5*512}")
    a(f"s_mul_i32 s{sT1}, s{sTb}, {O_TB}")
    a(f"s_add_u32 s{sT0}, s{sT0}, s{sT1}")
    a(f"s_add_u32 s{sT0}, s{sT0}, {WS_O}")
    a(f"s_and_b32 s{sT1}, s{sHead}, 1")
    a(f"s_lshl_b32 s{sSo}, s{sT1}, 10")
    a(f"s_add_u32 s{sSo}, s{sSo}, s{sT0}")
    a(f"s_lshl_b32 s{sT1}, s{sT1}, 3")
    a(f"s_add_u32 s{sT0}, s{sT0}, s{sT1}")
    a("s_waitcnt lgkmcnt(3)")
    a(f"v_or3_b32 {V(t[0])}, {V(Va[0])}, {V(Va[0]+1)}, {V(Va[0]+2)}")
    a(f"v_or3_b32 {V(t[0])}, {V(t[0])}, {V(Va[0]+3)}, {V(Va[1])}")
    a(f"v_or3_b32 {V(t[0])}, {V(t[0])}, {V(Va[1]+1)}, {V(Va[1]+2)}")
    a(f"v_or_b32 {V(t[0])}, {V(t[0])}, {V(Va[1]+3)}")
    a("s_nop 0")
    a(f"v_readfirstlane_b32 s{sT1}, {V(t[0])}")
    a(f"s_cmp_eq_u32 s{sPass}, 0")
    a(f"s_cselect_b32 s{sT1}, s{sT1}, 0")
    a(f"s_cmp_lg_u32 s{sT1}, 0")
    a("s_waitcnt lgkmcnt(0)")
    a("s_cbranch_scc1 L2_fallback")
    o = O[0]
    for r in range(12):
        a(f"v_add_f32 {V(o+r)}, {V(o+r)}, {V(Sx[0]+r)}")
    a(f"v_mov_b32 {V(t[0])}, {V(o+8)}")
    a(f"v_mov_b32 {V(t[1])}, {V(o+8)}")
    a("s_nop 1")
    a(f"v_permlane32_swap_b32 {V(t[0])}, {V(t[1])}")
    a("s_nop 1")
    a(f"v_rcp_f32 {V(t[1])}, {V(t[1])}")
    a("s_nop 0")
    for r in range(12):
        a(f"v_mul_f32 {V(o+r)}, {V(t[1])}, {V(o+r)}")
    for r in range(6):
        a(f"v_cvt_pk_bf16_f32 {V(o+r)}, {V(o+2*r)}, {V(o+2*r+1)}")
    a("s_nop 1")
    a(f"v_permlane32_swap_b32 {V(o)}, {V(o+2)}")
    a(f"v_permlane32_swap_b32 {V(o+1)}, {V(o+3)}")
    a("s_nop 1")
    a(f"buffer_store_dwordx4 {V(o,4)}, {V(vKa)}, s[{rQ}:{rQ+3}], s{sSo} offen")
    a("s_mov_b32 exec_hi, 0")
    a(f"buffer_store_dwordx2 {V(o+4,2)}, {V(vKa)}, s[{rQ}:{rQ+3}], s{sT0} offen offset:2048")
    a.stamp(7)
    END()

    a("L2_fallback:")
    a(f"s_mov_b32 s{sPass}, 1")
    a(f"s_mov_b32 s{sTile}, 0")
    a(f"s_mov_b32 s{sM0}, s{sM0b}")
    a(f"s_mov_b32 s{sCnt}, 8")
    a(f"v_and_b32 {V(t[1])}, 31, {V(vL)}")
    a(f"v_lshlrev_b32 {V(vKb)}, 3, {V(t[1])}")
    a(f"v_add_u32 {V(vKb)}, 1024, {V(vKb)}")
    for x in range(2):
        for r in range(2):
            a(f"v_cndmask_b32 {V(Qb[x]+r)}, {V(Qb[x]+r)}, 0, s[{sHi}:{sHi+1}]")
    a(f"v_mov_b32 {V(t[0])}, 0xff800000")
    a(f"v_mov_b32 {V(t[1])}, 0xff800000")
    a("L2_fb_tile:")
    a("s_barrier")
    dma()
    a("s_waitcnt vmcnt(0)")
    a("s_barrier")
    a(f"s_mov_b32 s{sSlot}, 8")
    a(f"v_mov_b32 {V(vV)}, {V(vKa)}")
    a(f"v_mov_b32 {V(vIdx)}, {V(vKb)}")
    a("L2_fb_blk:")
    a(f"ds_read_b128 {V(Ka,4)}, {V(vV)}")
    a(f"ds_read_b64 {V(Kb,2)}, {V(vIdx)}")
    a(f"v_add_u32 {V(vV)}, {BLK}, {V(vV)}")
    a(f"v_add_u32 {V(vIdx)}, {BLK}, {V(vIdx)}")
    a("s_waitcnt lgkmcnt(0)")
    qk1(0); qk2(0); qk1(1); qk2(1)
    a("s_nop 15")
    rowmax(0, t[0], False)
    rowmax(1, t[1], False)
    a(f"s_sub_u32 s{sSlot}, s{sSlot}, 1")
    a(f"s_cmp_lg_u32 s{sSlot}, 0")
    a("s_cbranch_scc1 L2_fb_blk")
    a(f"s_sub_u32 s{sCnt}, s{sCnt}, 1")
    a(f"s_cmp_lg_u32 s{sCnt}, 0")
    a("s_cbranch_scc1 L2_fb_tile")
    set_negmax(0, t[0])
    set_negmax(1, t[1])
    a("s_barrier")
    a("s_branch L2_start")

    a("L2_moe:")
    a(f"s_cmp_ge_u32 s{sWave}, 4")
    a("s_cbranch_scc1 L2_end")
    sX, sG, sU, sD = 6, 36, 38, 40
    rX, rG, rU, rD = 8, 44, 48, 52
    rW = 12
    sWi = 17
    sK = 56
    a(f"s_load_dwordx2 s[{sX}:{sX+1}], s[0:1], 0")
    a(f"s_load_dwordx4 s[{sG}:{sG+3}], s[0:1], 40")
    a(f"s_load_dwordx2 s[{sD}:{sD+1}], s[0:1], 56")
    M = Regs(2, 128)
    u = [M.alloc() for _ in range(8)]
    vK = M.alloc(2, 2); vSt = M.alloc(2, 2); vR = M.alloc()
    xb = M.alloc(20, 4)
    wf = M.alloc(40, 4)
    G = M.alloc(4, 4); U = M.alloc(4, 4)
    hb = M.alloc(2, 2)
    a(f"s_sub_u32 s{sWi}, s2, 256")
    a(f"v_lshlrev_b32 {V(u[0])}, 3, {V(vL)}")
    a("s_waitcnt lgkmcnt(0)")
    srd(a, rW, sWS, WS_END)
    srd(a, rX, sX, X_BYTES)
    srd(a, rG, sG, WG_BYTES)
    srd(a, rU, sU, WG_BYTES)
    srd(a, rD, sD, WD_BYTES)
    a(f"s_mov_b32 s{sT0}, {WS_CAND}")
    a(f"buffer_load_dwordx2 {V(vK,2)}, {V(u[0])}, s[{rW}:{rW+3}], s{sT0} offen")
    a(f"v_lshrrev_b32 {V(u[1])}, 1, {V(vL)}")
    a(f"v_mul_u32_u24 {V(u[1])}, {WG_ROWB}, {V(u[1])}")
    a(f"v_and_b32 {V(u[2])}, 1, {V(vL)}")
    a(f"v_lshl_add_u32 {V(u[1])}, {V(u[2])}, 4, {V(u[1])}")
    a(f"s_mul_i32 s{sT0}, s{sWave}, {160*WG_ROWB}")
    a(f"s_lshl_b32 s{sT1}, s{sWi}, 5")
    a(f"s_add_u32 s{sT0}, s{sT0}, s{sT1}")
    a(f"s_mul_i32 s{sT2}, s{sWave}, 5120")
    a(f"v_lshlrev_b32 {V(u[2])}, 4, {V(vL)}")
    for i in range(5):
        a(f"s_add_u32 m0, s{sT2}, {1024*i}")
        a(f"s_add_u32 s{sT1}, s{sT0}, {32*i*WG_ROWB}")
        a(f"buffer_load_dwordx4 {V(u[1])}, s[{rG}:{rG+3}], s{sT1} offen lds")
        a(f"s_add_u32 m0, s{sT2}, {20480+1024*i}")
        a("s_nop 0")
        a(f"buffer_load_dwordx4 {V(u[1])}, s[{rU}:{rU+3}], s{sT1} offen lds")
    a(f"s_mul_i32 s{sT0}, s{sWi}, 20480")
    a(f"s_add_u32 s{sT0}, s{sT0}, s{sT2}")
    a(f"s_add_u32 m0, s{sT2}, 40960")
    a(f"s_add_u32 s{sT1}, s{sT0}, 4096")
    for i in range(4):
        a(f"buffer_load_dwordx4 {V(u[2])}, s[{rD}:{rD+3}], s{sT0} offen offset:{1024*i} lds")
    a(f"s_add_u32 m0, s{sT2}, {40960+4096}")
    a("s_nop 0")
    a(f"buffer_load_dwordx4 {V(u[2])}, s[{rD}:{rD+3}], s{sT1} offen lds")
    a.stamp(2)
    a("s_waitcnt vmcnt(15)")
    a.stamp(3)
    top8_rounds(a, vK, vK + 1, u[3], sK, 64, "m")
    a(f"v_mov_b32 {V(u[3])}, 2047")
    for i in range(8):
        a(f"v_writelane_b32 {V(u[3])}, s{sK+i}, {i}")
    a(f"v_and_b32 {V(u[4])}, 15, {V(vL)}")
    a(f"v_lshlrev_b32 {V(u[5])}, 2, {V(u[4])}")
    a(f"v_and_b32 {V(u[3])}, 0x7ff, {V(u[3])}")
    a(f"v_sub_u32 {V(u[3])}, 2047, {V(u[3])}")
    a(f"ds_bpermute_b32 {V(u[3])}, {V(u[5])}, {V(u[3])}")
    a(f"v_lshrrev_b32 {V(u[6])}, 4, {V(vL)}")
    a(f"s_mul_i32 s{sT0}, s{sWave}, 320")
    a(f"s_mov_b32 s{sT1}, {WS_STAT}")
    a(f"s_mov_b32 s{sT2}, {WS_R}")
    a("s_waitcnt lgkmcnt(0)")
    a(f"v_mul_u32_u24 {V(u[5])}, {ROWB}, {V(u[3])}")
    a(f"v_lshl_add_u32 {V(u[5])}, {V(u[6])}, 4, {V(u[5])}")
    for s in range(5):
        a(f"buffer_load_dwordx4 {V(xb+4*s,4)}, {V(u[5])}, s[{rX}:{rX+3}], s{sT0} offen offset:{64*s}")
    a(f"v_lshlrev_b32 {V(u[7])}, 3, {V(u[3])}")
    a(f"v_lshlrev_b32 {V(u[5])}, 2, {V(u[3])}")
    a(f"buffer_load_dwordx2 {V(vSt,2)}, {V(u[7])}, s[{rW}:{rW+3}], s{sT1} offen")
    a(f"buffer_load_dword {V(vR)}, {V(u[5])}, s[{rW}:{rW+3}], s{sT2} offen")
    a(f"v_bfe_u32 {V(u[5])}, {V(vL)}, 2, 2")
    a(f"v_lshl_add_u32 {V(u[7])}, {V(u[6])}, 3, {V(u[5])}")
    a(f"v_lshlrev_b32 {V(u[7])}, 5, {V(u[7])}")
    a(f"v_and_b32 {V(u[0])}, 3, {V(vL)}")
    a(f"v_lshl_add_u32 {V(u[7])}, {V(u[0])}, 3, {V(u[7])}")
    a(f"s_mul_i32 s{sT0}, s{sWave}, 5120")
    a(f"v_add_u32 {V(u[7])}, s{sT0}, {V(u[7])}")
    a.stamp(4)
    a("s_waitcnt vmcnt(12)")
    for s in range(5):
        for mtx in range(2):
            for tt in range(2):
                a(f"ds_read_b64_tr_b16 {V(wf+8*s+4*mtx+2*tt,2)}, {V(u[7])} offset:{20480*mtx+1024*s+128*tt}")
    a(f"v_cmp_le_u32 vcc, 8, {V(u[4])}")
    a(f"v_mov_b32 {V(u[1])}, 0x3f803f80")
    a("s_waitcnt vmcnt(2)")
    for r in range(20):
        a(f"v_cndmask_b32 {V(xb+r)}, {V(xb+r)}, {V(u[1])}, vcc")
    a("s_waitcnt lgkmcnt(0)")
    a("s_nop 1")
    for s in range(5):
        cg = "0" if s == 0 else V(G, 4)
        cu = "0" if s == 0 else V(U, 4)
        a(f"v_mfma_f32_16x16x32_bf16 {V(G,4)}, {V(wf+8*s,4)}, {V(xb+4*s,4)}, {cg}")
        a(f"v_mfma_f32_16x16x32_bf16 {V(U,4)}, {V(wf+8*s+4,4)}, {V(xb+4*s,4)}, {cu}")
    PART = 61440
    a(f"s_lshl_b32 s{sT0}, s{sWave}, 11")
    a(f"s_add_u32 s{sT0}, s{sT0}, {PART}")
    a(f"v_add_u32 {V(u[1])}, s{sT0}, {V(u[2])}")
    a(f"v_add_u32 {V(u[2])}, {PART}, {V(u[2])}")
    a(f"v_lshl_add_u32 {V(u[7])}, {V(u[6])}, 2, {V(u[5])}")
    a(f"v_mul_u32_u24 {V(u[7])}, {ROWB}, {V(u[7])}")
    a(f"v_lshl_add_u32 {V(u[7])}, {V(u[0])}, 3, {V(u[7])}")
    a(f"s_mul_i32 s{sT0}, s{sWave}, 320")
    a(f"s_add_u32 s{sT0}, s{sT0}, 40960")
    a(f"v_add_u32 {V(u[7])}, s{sT0}, {V(u[7])}")
    a("s_nop 4")
    a(f"ds_write_b128 {V(u[1])}, {V(G,4)}")
    a(f"ds_write_b128 {V(u[1])}, {V(U,4)} offset:1024")
    a("s_waitcnt vmcnt(0) lgkmcnt(0)")
    a("s_barrier")
    a.stamp(5)
    for w in range(4):
        for mtx in range(2):
            a(f"ds_read_b128 {V(wf+8*w+4*mtx,4)}, {V(u[2])} offset:{2048*w+1024*mtx}")
    for T in range(10):
        a(f"ds_read_b64_tr_b16 {V(xb+2*T,2)}, {V(u[7])} offset:{32*T}")
    a("s_waitcnt lgkmcnt(10)")
    for mtx, dst in ((0, G), (1, U)):
        for r in range(4):
            a(f"v_add_f32 {V(dst+r)}, {V(wf+4*mtx+r)}, {V(wf+8+4*mtx+r)}")
            a(f"v_add_f32 {V(wf+16+4*mtx+r)}, {V(wf+16+4*mtx+r)}, {V(wf+24+4*mtx+r)}")
        for r in range(4):
            a(f"v_add_f32 {V(dst+r)}, {V(dst+r)}, {V(wf+16+4*mtx+r)}")
    a("s_nop 1")
    for i in range(8):
        a(f"v_mov_b32_dpp {V(wf+i)}, {V(G+i)} row_newbcast:8 row_mask:0xf bank_mask:0xf")
    assert U == G + 4
    for i in range(8):
        a(f"v_fma_f32 {V(G+i)}, -{V(vSt)}, {V(wf+i)}, {V(G+i)}")
    for i in range(8):
        a(f"v_mul_f32 {V(G+i)}, {V(vSt+1)}, {V(G+i)}")
    for i in range(8):
        bf16_round(a, G + i, G + i)
    for i in range(4):
        a(f"v_mul_f32 {V(wf+i)}, {hex(f32bits(-1.4426950408889634))}, {V(G+i)}")
    for i in range(4): a(f"v_exp_f32 {V(wf+i)}, {V(wf+i)}")
    for i in range(4): a(f"v_add_f32 {V(wf+i)}, 1.0, {V(wf+i)}")
    for i in range(4): a(f"v_rcp_f32 {V(wf+i)}, {V(wf+i)}")
    for i in range(4): a(f"v_mul_f32 {V(G+i)}, {V(G+i)}, {V(wf+i)}")
    for i in range(4): bf16_round(a, G + i, G + i)
    for i in range(4): a(f"v_mul_f32 {V(G+i)}, {V(G+i)}, {V(U+i)}")
    a(f"v_cvt_pk_bf16_f32 {V(hb)}, {V(G)}, {V(G+1)}")
    a(f"v_cvt_pk_bf16_f32 {V(hb+1)}, {V(G+2)}, {V(G+3)}")
    a(f"v_mul_u32_u24 {V(u[1])}, 2560, {V(u[4])}")
    a(f"v_lshl_add_u32 {V(u[1])}, {V(u[6])}, 4, {V(u[1])}")
    a(f"s_mul_i32 s{sT0}, s{sWi}, 20480")
    a(f"s_mul_i32 s{sT1}, s{sWave}, 640")
    a(f"s_add_u32 s{sT0}, s{sT0}, s{sT1}")
    a(f"s_add_u32 s{sT0}, s{sT0}, {WS_YP}")
    a("s_waitcnt lgkmcnt(0)")
    for T in range(10):
        a(f"v_mfma_f32_16x16x16_bf16 {V(wf+4*T,4)}, {V(xb+2*T,2)}, {V(hb,2)}, 0")
    bf16_round(a, vR, vR)
    a(f"v_mul_f32 {V(vR)}, {hex(f32bits(-1.4426950408889634))}, {V(vR)}")
    a(f"v_exp_f32 {V(vR)}, {V(vR)}")
    a("s_nop 0")
    a(f"v_add_f32 {V(vR)}, 1.0, {V(vR)}")
    a(f"v_rcp_f32 {V(vR)}, {V(vR)}")
    a("s_nop 0")
    bf16_round(a, vR, vR)
    a(f"v_lshlrev_b32 {V(u[0])}, 2, {V(vL)}")
    a(f"s_mov_b32 exec_lo, 0x00ff00ff")
    a(f"s_mov_b32 exec_hi, 0x00ff00ff")
    for T in range(10):
        a(f"buffer_store_dwordx4 {V(wf+4*T,4)}, {V(u[1])}, s[{rW}:{rW+3}], s{sT0} offen offset:{64*T}")
    a(f"s_or_b32 s{sT1}, s{sWi}, s{sWave}")
    a(f"s_cmp_lg_u32 s{sT1}, 0")
    a("s_cbranch_scc1 L2_moe_end")
    a("s_mov_b64 exec, 0xff")
    a(f"s_mov_b32 s{sT1}, {WS_SEL}")
    a(f"buffer_store_dword {V(u[3])}, {V(u[0])}, s[{rW}:{rW+3}], s{sT1} offen")
    a(f"buffer_store_dword {V(vR)}, {V(u[0])}, s[{rW}:{rW+3}], s{sT1} offen offset:32")
    a("L2_moe_end:")
    END()
    a("L2_end:")
    a("s_endpgm")
    return name, max(R.hi, M.hi)
```

```python
from asmlib import *
from layout import *
from k1 import bf16_round

UPD = 81920
XCH = UPD + 9 * 256
K3_LDS = XCH + 6 * 4096
K3_GRID = 240

def gen_k3(a):
    name = "oproj_kernel"
    kernel_header(a, name)
    sX, sWO, sOut, sWS = 4, 6, 8, 10
    rX, rWO, rOut, rO, rW = 12, 16, 20, 24, 28
    sWave, sRow, sCol, sT0, sT1, sT2, sT3, sAny = 32, 33, 34, 35, 36, 37, 38, 39
    sSel = 40
    sKh, sTb, sC = 56, 57, 58
    vL = 1
    a(f"s_cmp_ge_u32 s2, {K3_GRID}")
    a("s_cbranch_scc1 L3_end")
    a.stamp_init()
    END = lambda: a.end(2, rW, sWave, WS_DBG)
    a(f"s_load_dwordx2 s[{sX}:{sX+1}], s[0:1], 0")
    a(f"s_load_dwordx2 s[{sWO}:{sWO+1}], s[0:1], 16")
    a(f"s_load_dwordx2 s[{sOut}:{sOut+1}], s[0:1], 64")
    a(f"s_load_dwordx2 s[{sWS}:{sWS+1}], s[0:1], 80")
    a("v_lshrrev_b32 v2, 6, v0")
    a(f"v_and_b32 {V(vL)}, 63, v0")
    a(f"v_readfirstlane_b32 s{sWave}, v2")
    a(f"s_lshr_b32 s{sT0}, s2, 3")
    a(f"s_mul_i32 s{sT1}, s{sT0}, 205")
    a(f"s_lshr_b32 s{sT1}, s{sT1}, 10")
    a(f"s_mul_i32 s{sT2}, s{sT1}, 5")
    a(f"s_sub_u32 s{sT0}, s{sT0}, s{sT2}")
    a(f"s_and_b32 s{sT2}, s2, 1")
    a(f"s_mul_i32 s{sT2}, s{sT2}, 5")
    a(f"s_add_u32 s{sCol}, s{sT0}, s{sT2}")
    a(f"s_bfe_u32 s{sT2}, s2, 0x20001")
    a(f"s_and_b32 s{sT3}, s{sT2}, 1")
    a(f"s_sub_u32 s{sT0}, 6, s{sT3}")
    a(f"s_cmp_ge_u32 s{sT1}, s{sT0}")
    a("s_cbranch_scc1 L3_end")
    a(f"s_mul_i32 s{sT2}, s{sT2}, 11")
    a(f"s_add_u32 s{sT2}, s{sT2}, 1")
    a(f"s_lshr_b32 s{sT2}, s{sT2}, 1")
    a(f"s_add_u32 s{sRow}, s{sT2}, s{sT1}")
    a(f"s_mul_i32 s{sRow}, s{sRow}, 96")
    R = Regs(2, 256)
    t = [R.alloc() for _ in range(6)]
    vN, vHi, vA0, vA1, vTok = [R.alloc() for _ in range(5)]
    vSt = R.alloc(2, 2)
    xr = R.alloc(8, 4)
    of = R.alloc(80, 4)
    wf = [R.alloc(8, 4) for _ in range(2)]
    acc = [R.alloc(16, 4) for _ in range(2)]
    xv = R.alloc(16, 4); xn = R.alloc(16, 4)
    a(f"v_lshrrev_b32 {V(t[0])}, 3, {V(vL)}")
    a(f"v_mul_u32_u24 {V(vN)}, {ROWB}, {V(t[0])}")
    a(f"v_bfe_u32 {V(t[1])}, {V(vL)}, 4, 1")
    a(f"v_lshlrev_b32 {V(t[1])}, 2, {V(t[1])}")
    a(f"v_and_b32 {V(t[2])}, 7, {V(vL)}")
    a(f"v_xor_b32 {V(t[1])}, {V(t[1])}, {V(t[2])}")
    a(f"v_lshl_add_u32 {V(vN)}, {V(t[1])}, 4, {V(vN)}")
    a(f"s_lshl_b32 s{sT0}, s{sCol}, 7")
    a(f"v_add_u32 {V(vN)}, s{sT0}, {V(vN)}")
    a(f"v_lshrrev_b32 {V(vHi)}, 5, {V(vL)}")
    a(f"v_lshlrev_b32 {V(t[5])}, 4, {V(vL)}")
    a("s_waitcnt lgkmcnt(0)")
    srd(a, rWO, sWO, WO_BYTES)
    srd(a, rO, sWS, O_BYTES, WS_O)
    srd(a, rX, sX, X_BYTES)
    srd(a, rW, sWS, WS_END)
    srd(a, rOut, sOut, X_BYTES)
    a(f"s_add_u32 s{sT0}, s{sWS}, {WS_SEL}")
    a(f"s_addc_u32 s{sT1}, s{sWS+1}, 0")
    a(f"s_mov_b32 s60, s{sT0}")
    a(f"s_mov_b32 s61, s{sT1}")
    a(f"s_load_dwordx16 s[{sSel}:{sSel+15}], s[60:61], 0")

    def wo_dma(cadd):
        a(f"s_add_u32 s{sT0}, s{sC}, {cadd}")
        a(f"s_lshl_b32 m0, s{sT0}, 10")
        a(f"s_mul_i32 s{sT1}, s{sT0}, 205")
        a(f"s_lshr_b32 s{sT1}, s{sT1}, 10")
        a(f"s_mul_i32 s{sT2}, s{sT1}, 5")
        a(f"s_sub_u32 s{sT0}, s{sT0}, s{sT2}")
        a(f"s_mul_i32 s{sT1}, s{sT1}, 40")
        a(f"s_lshl_b32 s{sT2}, s{sT0}, 3")
        a(f"s_lshr_b32 s{sT3}, s{sT0}, 1")
        a(f"s_lshl_b32 s{sT3}, s{sT3}, 2")
        a(f"s_add_u32 s{sT2}, s{sT2}, s{sT3}")
        a(f"s_cmp_eq_u32 s{sT0}, 4")
        a(f"s_cselect_b32 s{sT2}, 16, s{sT2}")
        a(f"s_cselect_b32 s{sT3}, {16*ROWB}, 0")
        a(f"s_add_u32 s{sT1}, s{sT1}, s{sT2}")
        a(f"s_mul_i32 s{sT1}, s{sT1}, {ROWB}")
        a(f"v_mad_u32_u24 {V(t[0])}, {V(vHi)}, s{sT3}, {V(vN)}")
        a(f"buffer_load_dwordx4 {V(t[0])}, s[{rWO}:{rWO+3}], s{sT1} offen lds")

    def any_sel():
        a(f"s_mov_b32 s{sAny}, 0")
        for k in range(8):
            a(f"s_sub_u32 s{sT0}, s{sSel+k}, s{sRow}")
            a(f"s_cmp_lt_u32 s{sT0}, 96")
            a(f"s_cselect_b32 s{sT0}, {1<<k}, 0")
            a(f"s_or_b32 s{sAny}, s{sAny}, s{sT0}")

    a(f"s_mov_b32 s{sC}, s{sWave}")
    a.stamp(2)
    a(f"s_cmp_ge_u32 s{sWave}, 6")
    a("s_cbranch_scc1 L3_helper")
    a(f"s_cmp_ge_u32 s{sWave}, 3")
    a(f"s_cselect_b32 s{sKh}, 1, 0")
    a(f"s_mul_i32 s{sT0}, s{sKh}, 3")
    a(f"s_sub_u32 s{sT0}, s{sWave}, s{sT0}")
    a(f"s_lshr_b32 s{sTb}, s{sRow}, 5")
    a(f"s_add_u32 s{sTb}, s{sTb}, s{sT0}")
    a(f"s_mul_i32 s62, s{sTb}, {O_TB}")
    a(f"s_mul_i32 s{sT0}, s{sKh}, 20480")
    a(f"s_add_u32 s62, s62, s{sT0}")
    for p in range(5):
        wo_dma(8 * p)
        wo_dma(40 + 8 * p)
        for s in range(4):
            a(f"buffer_load_dwordx4 {V(of+16*p+4*s,4)}, {V(t[5])}, s[{rO}:{rO+3}], s62 offen offset:{1024*s}")
        if p < 4: a("s_add_u32 s62, s62, 4096")
        if p == 0:
            a(f"v_and_b32 {V(vTok)}, 31, {V(vL)}")
            a(f"s_lshl_b32 s{sT0}, s{sTb}, 5")
            a(f"v_add_u32 {V(vTok)}, s{sT0}, {V(vTok)}")
            a(f"v_mul_u32_u24 {V(t[3])}, {ROWB}, {V(vTok)}")
            a(f"v_lshl_add_u32 {V(t[3])}, {V(vHi)}, 4, {V(t[3])}")
            a(f"s_lshl_b32 s{sT0}, s{sCol}, 7")
            a(f"s_lshl_b32 s{sT1}, s{sKh}, 6")
            a(f"s_add_u32 s63, s{sT0}, s{sT1}")
            a(f"v_lshlrev_b32 {V(t[4])}, 3, {V(vTok)}")
            a(f"s_mov_b32 s{sT0}, {WS_STAT}")
            a(f"buffer_load_dwordx4 {V(xr,4)}, {V(t[3])}, s[{rX}:{rX+3}], s63 offen")
            a(f"buffer_load_dwordx4 {V(xr+4,4)}, {V(t[3])}, s[{rX}:{rX+3}], s63 offen offset:32")
            a(f"buffer_load_dwordx2 {V(vSt,2)}, {V(t[4])}, s[{rW}:{rW+3}], s{sT0} offen")
    a(f"v_bfe_u32 {V(t[0])}, {V(vL)}, 2, 2")
    a(f"v_lshl_add_u32 {V(t[1])}, {V(vHi)}, 3, {V(t[0])}")
    a(f"v_lshlrev_b32 {V(t[1])}, 7, {V(t[1])}")
    a(f"v_lshrrev_b32 {V(t[0])}, 1, {V(t[0])}")
    a(f"v_xor_b32 {V(t[0])}, s{sKh}, {V(t[0])}")
    a(f"v_lshl_add_u32 {V(t[1])}, {V(t[0])}, 6, {V(t[1])}")
    a(f"v_bfe_u32 {V(t[0])}, {V(vL)}, 4, 1")
    a(f"v_lshl_add_u32 {V(t[1])}, {V(t[0])}, 5, {V(t[1])}")
    a(f"v_and_b32 {V(t[0])}, 3, {V(vL)}")
    a(f"v_lshl_add_u32 {V(t[1])}, {V(t[0])}, 3, {V(t[1])}")
    a(f"s_mul_i32 s{sT0}, s{sKh}, 40960")
    a(f"v_add_u32 {V(vA0)}, s{sT0}, {V(t[1])}")
    a(f"v_xor_b32 {V(vA1)}, 64, {V(vA0)}")
    a("s_waitcnt lgkmcnt(0)")
    any_sel()
    def reads(st, ks):
        for ti, va in enumerate((vA0, vA1)):
            for tt in range(2):
                a(f"ds_read_b64_tr_b16 {V(wf[st]+4*ti+2*tt,2)}, {V(va)} offset:{ks*2048+tt*512}")
    def mm(st, ks):
        for ti in range(2):
            c = "0" if ks == 0 else V(acc[ti], 16)
            a(f"v_mfma_f32_32x32x16_bf16 {V(acc[ti],16)}, {V(wf[st]+4*ti,4)}, {V(of+4*ks,4)}, {c}")
    def residual():
        a(f"v_permlane32_swap_b32 {V(xr)}, {V(xr+2)}")
        a(f"v_permlane32_swap_b32 {V(xr+1)}, {V(xr+3)}")
        a(f"v_permlane32_swap_b32 {V(xr+4)}, {V(xr+6)}")
        a(f"v_permlane32_swap_b32 {V(xr+5)}, {V(xr+7)}")
        a("s_nop 1")
        for i in range(8):
            a(f"v_lshlrev_b32 {V(xv+2*i)}, 16, {V(xr+i)}")
            a(f"v_and_b32 {V(xv+2*i+1)}, 0xffff0000, {V(xr+i)}")
        for i in range(16):
            a(f"v_sub_f32 {V(xn+i)}, {V(xv+i)}, {V(vSt)}")
        for rnd in range(2):
            for i in range(8):
                a(f"v_cvt_pk_bf16_f32 {V(xr+i)}, {V(xn+2*i)}, {V(xn+2*i+1)}")
            for i in range(8):
                a(f"v_lshlrev_b32 {V(xn+2*i)}, 16, {V(xr+i)}")
                a(f"v_and_b32 {V(xn+2*i+1)}, 0xffff0000, {V(xr+i)}")
            if rnd == 0:
                for i in range(16):
                    a(f"v_mul_f32 {V(xn+i)}, {V(vSt+1)}, {V(xn+i)}")
    total = 33
    a.stamp(3)
    for p in range(5):
        done = 6 * (p + 1) + (3 if p >= 1 else 0)
        if p == 0:
            a(f"s_waitcnt vmcnt({total-6})")
        else:
            a(f"s_waitcnt vmcnt({total-done})")
        a("s_barrier")
        if p in (0, 2, 4): a.stamp(4 + p // 2)
        reads(0, 4 * p)
        for s in range(4):
            ks = 4 * p + s
            if s < 3:
                reads((s + 1) % 2, ks + 1)
                a("s_waitcnt lgkmcnt(4)")
            else:
                a("s_waitcnt lgkmcnt(0)")
            mm(s % 2, ks)
        if p == 1: residual()
    a(f"s_lshl_b32 s{sT0}, s{sWave}, 12")
    a(f"s_add_u32 s{sT0}, s{sT0}, {XCH}")
    a(f"v_add_u32 {V(t[0])}, s{sT0}, {V(t[5])}")
    a(f"s_mul_i32 s{sT1}, s{sKh}, {(-6*4096) & 0xffffffff}")
    a(f"s_add_u32 s{sT0}, s{sT0}, s{sT1}")
    a(f"s_add_u32 s{sT0}, s{sT0}, {3*4096}")
    a(f"v_add_u32 {V(t[1])}, s{sT0}, {V(t[5])}")
    a("s_nop 6")
    for k in range(4):
        a(f"ds_write_b128 {V(t[0])}, {V(acc[1]+4*k,4)} offset:{1024*k}")
    a("s_waitcnt lgkmcnt(0)")
    a.stamp(7)
    a("s_barrier")
    a.stamp(8)
    for k in range(4):
        a(f"ds_read_b128 {V(of+4*k,4)}, {V(t[1])} offset:{1024*k}")
    a(f"s_cmp_eq_u32 s{sAny}, 0")
    a("s_cbranch_scc1 L3_noupd")
    a(f"v_mov_b32 {V(t[2])}, 8")
    for k in range(8):
        a(f"v_cmp_ne_u32 vcc, s{sSel+k}, {V(vTok)}")
        a("s_nop 1")
        a(f"v_cndmask_b32 {V(t[2])}, {k}, {V(t[2])}, vcc")
    a(f"v_lshlrev_b32 {V(t[2])}, 8, {V(t[2])}")
    a(f"v_lshl_add_u32 {V(t[2])}, {V(vHi)}, 4, {V(t[2])}")
    a(f"s_lshl_b32 s{sT0}, s{sKh}, 7")
    a(f"s_add_u32 s{sT0}, s{sT0}, {UPD}")
    a(f"v_add_u32 {V(t[2])}, s{sT0}, {V(t[2])}")
    for q in range(4):
        a(f"ds_read_b128 {V(of+16+4*q,4)}, {V(t[2])} offset:{32*q}")
    a("s_waitcnt lgkmcnt(0)")
    for i in range(16):
        a(f"v_add_f32 {V(xn+i)}, {V(xn+i)}, {V(of+16+i)}")
    for i in range(16):
        bf16_round(a, xn + i, xn + i)
    a("L3_noupd:")
    for i in range(16):
        a(f"v_add_f32 {V(xv+i)}, {V(xv+i)}, {V(xn+i)}")
    for i in range(16):
        a(f"v_add_f32 {V(xv+i)}, {V(xv+i)}, {V(acc[0]+i)}")
    a("s_waitcnt lgkmcnt(0)")
    for i in range(16):
        a(f"v_add_f32 {V(xv+i)}, {V(xv+i)}, {V(of+i)}")
    for i in range(8):
        a(f"v_cvt_pk_bf16_f32 {V(xr+i)}, {V(xv+2*i)}, {V(xv+2*i+1)}")
    a("s_nop 1")
    a(f"v_permlane32_swap_b32 {V(xr)}, {V(xr+2)}")
    a(f"v_permlane32_swap_b32 {V(xr+1)}, {V(xr+3)}")
    a(f"v_permlane32_swap_b32 {V(xr+4)}, {V(xr+6)}")
    a(f"v_permlane32_swap_b32 {V(xr+5)}, {V(xr+7)}")
    a(f"buffer_store_dwordx4 {V(xr,4)}, {V(t[3])}, s[{rOut}:{rOut+3}], s63 offen")
    a(f"buffer_store_dwordx4 {V(xr+4,4)}, {V(t[3])}, s[{rOut}:{rOut+3}], s63 offen offset:32")
    a.stamp(9)
    END()

    a("L3_helper:")
    for p in range(5):
        wo_dma(8 * p)
        wo_dma(40 + 8 * p)
    a("s_waitcnt lgkmcnt(0)")
    any_sel()
    for p in range(5):
        a(f"s_waitcnt vmcnt({8-2*p})")
        a("s_barrier")
        if p == 0:
            a(f"s_cmp_eq_u32 s{sAny}, 0")
            a("s_cbranch_scc1 L3_h_rest")
    a(f"v_lshrrev_b32 {V(t[0])}, 4, {V(vL)}")
    a(f"v_mul_u32_u24 {V(t[0])}, 20480, {V(t[0])}")
    a(f"v_and_b32 {V(t[1])}, 15, {V(vL)}")
    a(f"v_lshlrev_b32 {V(t[1])}, 4, {V(t[1])}")
    a(f"v_add_u32 {V(t[0])}, {V(t[0])}, {V(t[1])}")
    a(f"v_add_u32 {V(t[2])}, {UPD+8*256}, {V(t[1])}")
    for i in range(4): a(f"v_mov_b32 {V(xr+i)}, 0")
    a(f"ds_write_b128 {V(t[2])}, {V(xr,4)}")
    ld = 20
    for k in range(8):
        lab = f"L3_h_skip{k}"
        a(f"s_and_b32 s{sT0}, s{sWave}, 1")
        a(f"s_cmp_lg_u32 s{sT0}, {k%2}")
        a(f"s_cbranch_scc1 {lab}")
        a(f"s_bitcmp0_b32 s{sAny}, {k}")
        a(f"s_cbranch_scc1 {lab}")
        a(f"s_mov_b32 s{sKh}, s{sSel+8+k}")
        a(f"s_mov_b32 s{sTb}, {k}")
        a("s_call_b64 s[62:63], L3_h_token")
        a(f"{lab}:")
    a("s_waitcnt lgkmcnt(0)")
    a("s_barrier")
    END()
    a("L3_h_token:")
    a(f"s_mul_i32 s{sT0}, s{sTb}, 2560")
    a(f"s_lshl_b32 s{sT1}, s{sCol}, 8")
    a(f"s_add_u32 s{sT0}, s{sT0}, s{sT1}")
    a(f"s_add_u32 s{sT0}, s{sT0}, {WS_YP}")
    for i in range(NW // 4):
        a(f"buffer_load_dwordx4 {V(ld+4*i,4)}, {V(t[0])}, s[{rW}:{rW+3}], s{sT0} offen")
        a(f"s_add_u32 s{sT0}, s{sT0}, {4*20480}")
    a("s_waitcnt vmcnt(0)")
    for i in range(1, NW // 4):
        for r in range(4):
            a(f"v_add_f32 {V(ld+r)}, {V(ld+r)}, {V(ld+4*i+r)}")
    for op in ("v_permlane32_swap_b32", "v_permlane16_swap_b32"):
        for r in range(4): a(f"v_mov_b32 {V(ld+4+r)}, {V(ld+r)}")
        a("s_nop 1")
        for r in range(4): a(f"{op} {V(ld+4+r)}, {V(ld+r)}")
        a("s_nop 1")
        for r in range(4): a(f"v_add_f32 {V(ld+r)}, {V(ld+r)}, {V(ld+4+r)}")
    for r in range(4): bf16_round(a, ld + r, ld + r)
    for r in range(4): a(f"v_mul_f32 {V(ld+r)}, s{sKh}, {V(ld+r)}")
    for r in range(4): bf16_round(a, ld + r, ld + r)
    a(f"s_lshl_b32 s{sT0}, s{sTb}, 8")
    a(f"s_add_u32 s{sT0}, s{sT0}, {UPD}")
    a(f"v_add_u32 {V(t[2])}, s{sT0}, {V(t[1])}")
    a(f"ds_write_b128 {V(t[2])}, {V(ld,4)}")
    a("s_setpc_b64 s[62:63]")
    a("L3_h_rest:")
    for p in range(1, 5):
        a(f"s_waitcnt vmcnt({8-2*p})")
        a("s_barrier")
    END()
    a("L3_end:")
    a("s_endpgm")
    return name, max(R.hi, ld + NW)
```

```python
import sys
from asmlib import *
from layout import *
import k1, k2, k3
HEADER = open("parallel_sum__softmax_full_mha__moe_arch_mod__prompt.s.ref").read().split("; Override launch")[0]
def build(extra_launch="", instr=False):
    a = Asm()
    a.instr = instr
    n1, v1 = k1.gen_k1(a)
    n2, v2 = k2.gen_k2(a)
    n3, v3 = k3.gen_k3(a)
    out = HEADER
    out += f"; @launch kernel={n1} grid=(256,1,1) block=(512,1,1) lds={k1.K1_LDS}\n"
    out += f"; @launch kernel={n2} grid=({256+NW},1,1) block=(512,1,1) lds={k2.K2_LDS}\n"
    out += f"; @launch kernel={n3} grid=({k3.K3_GRID},1,1) block=(512,1,1) lds={k3.K3_LDS}\n"
    out += extra_launch
    out += '.amdgcn_target "amdgcn-amd-amdhsa--gfx950"\n.text\n'
    out += a.text()
    out += '.section .rodata,"a"\n'
    for n, v in ((n1, v1), (n2, v2), (n3, v3)):
        out += kernel_desc(n, v)
    print("vgprs", v1, v2, v3, file=sys.stderr)
    return out
if __name__ == "__main__":
    path = sys.argv[1] if len(sys.argv) > 1 else "parallel_sum__softmax_full_mha__moe_arch_mod__prompt.s"
    open(path, "w").write(build())
    open("instr.s", "w").write(build(instr=1))
    open("instr2.s", "w").write(build(instr=2))
```

```python
import gen, sys
from asmlib import *
from layout import *
def probe(kA, iA, kB, iB, mult, aggA="min", aggB="max", nwg=200):
    a = Asm()
    kernel_header(a, "probe_kernel")
    a("s_cmp_lg_u32 s2, 0"); a("s_cbranch_scc1 LP_end")
    a("s_load_dwordx2 s[4:5], s[0:1], 80")
    a("s_waitcnt lgkmcnt(0)")
    srd(a, 8, 4, WS_END)
    a(f"v_min_u32 v1, {nwg-1}, v0")
    a("v_lshlrev_b32 v1, 9, v1")
    a(f"s_mov_b32 s12, {WS_DBG + kA*262144 + iA*4}")
    a(f"s_mov_b32 s13, {WS_DBG + kB*262144 + iB*4}")
    a("buffer_load_dword v2, v1, s[8:11], s12 offen")
    a("buffer_load_dword v3, v1, s[8:11], s13 offen")
    a(f"v_mov_b32 v4, {-1 if aggA=='min' else 0}"); a(f"v_mov_b32 v5, {-1 if aggB=='min' else 0}"); a("v_mov_b32 v6, 0")
    a("ds_write_b64 v6, v[4:5]")
    a("s_waitcnt vmcnt(0) lgkmcnt(0)"); a("s_barrier")
    a(f"ds_{aggA}_u32 v6, v2"); a(f"ds_{aggB}_u32 v6, v3 offset:4")
    a("s_waitcnt lgkmcnt(0)"); a("s_barrier")
    a("ds_read_b64 v[4:5], v6"); a("s_waitcnt lgkmcnt(0)")
    a("v_sub_u32 v4, v5, v4"); a("s_nop 1"); a("v_readfirstlane_b32 s14, v4")
    a(f"s_mul_i32 s14, s14, {mult}")
    a("s_min_u32 s14, s14, 20000")
    a("s_memrealtime s[16:17]"); a("s_waitcnt lgkmcnt(0)")
    a("LP_spin:")
    a("s_memrealtime s[18:19]"); a("s_waitcnt lgkmcnt(0)")
    a("s_sub_u32 s18, s18, s16"); a("s_cmp_lt_u32 s18, s14"); a("s_cbranch_scc1 LP_spin")
    a("LP_end:"); a("s_endpgm")
    return a.text()
def variant(name, *args, **kw):
    base = gen.build(extra_launch="; @launch kernel=probe_kernel grid=(1,1,1) block=(256,1,1) lds=64\n", instr=1)
    s = base.replace('.section .rodata,"a"', probe(*args, **kw) + '.section .rodata,"a"') + kernel_desc("probe_kernel", 8)
    open(f"var/{name}.s", "w").write(s)
if __name__ == "__main__":
    variant("p_zero", 0, 0, 0, 0, 0)
    variant("p_span", 0, 0, 2, 10, 1)
    variant("p_skew", 0, 0, 0, 0, 1)
    variant("p_k1", 0, 0, 0, 10, 1)
    variant("p_k2", 1, 0, 1, 10, 1)
    variant("p_k3", 2, 0, 2, 10, 1)
```

```python
class Asm:
    def __init__(self):
        self.lines = []
        self.uid = 0
    def __call__(self, s=""):
        for ln in s.split("\n"):
            ln = ln.strip()
            if not ln: continue
            if ln.endswith(":") or ln.startswith("."):
                self.lines.append(ln)
            else:
                self.lines.append("    " + ln)
    instr = False
    SB = 70
    KA = 0
    NK = 3
    DBGWG = 130
    PICKS = [[0,2,3,4,6,10],[0,3,4,5,10],[0,3,4,7,10],[]]
    def stamp(self, i):
        if not self.instr: return
        self(f"s_memrealtime s[{self.SB+2*i}:{self.SB+2*i+1}]")
    def stamp_cyc(self, i):
        if not self.instr: return
        self(f"s_memtime s[{self.SB+2*i}:{self.SB+2*i+1}]")
    def stamp_init(self):
        if not self.instr: return
        for i in range(2, 16): self(f"s_mov_b32 s{self.SB+2*i}, 0")
        self.stamp(0); self.stamp_cyc(1)
    def end(self, kidx, srd, swave, dbgoff, wshift=3):
        if self.instr == 2:
            lab = self.label("nodbg")
            self("s_waitcnt vmcnt(0) lgkmcnt(0)")
            self.stamp(10)
            self(f"s_load_dwordx2 s[{self.SB+2}:{self.SB+3}], s[{self.KA}:{self.KA+1}], 72")
            self(f"s_cmp_lg_u32 s{swave}, 0")
            self(f"s_cbranch_scc1 {lab}")
            self(f"s_cmp_lg_u32 s2, {self.DBGWG}")
            self(f"s_cbranch_scc1 {lab}")
            self("s_waitcnt lgkmcnt(0)")
            self("s_mov_b64 exec, -1")
            self("v_mov_b32 v2, 0")
            picks = self.PICKS[kidx]
            for i, p in enumerate(picks):
                self(f"v_writelane_b32 v2, s{self.SB+2*p}, {i}")
            off = sum(len(x) for x in self.PICKS[:kidx]) * 4
            self(f"s_add_u32 s{self.SB+2}, s{self.SB+2}, {512*(self.NK-1-kidx) + off}")
            self(f"s_addc_u32 s{self.SB+3}, s{self.SB+3}, 0")
            self("v_and_b32 v3, 63, v0")
            self("v_lshlrev_b32 v3, 2, v3")
            self(f"s_mov_b64 exec, {hex((1 << len(picks)) - 1)}")
            self(f"global_store_dword v3, v2, s[{self.SB+2}:{self.SB+3}]")
            self(f"{lab}:")
        elif self.instr:
            self("s_waitcnt vmcnt(0) lgkmcnt(0)")
            self.stamp(10); self.stamp_cyc(11)
            self("s_waitcnt lgkmcnt(0)")
            self("s_mov_b64 exec, -1")
            self("v_mov_b32 v2, 0")
            for i in range(16):
                self(f"v_writelane_b32 v2, s{self.SB+2*i}, {i}")
            self(f"s_lshl_b32 s{self.SB}, s2, {wshift}")
            self(f"s_add_u32 s{self.SB}, s{self.SB}, s{swave}")
            self(f"s_lshl_b32 s{self.SB}, s{self.SB}, 6")
            self(f"s_add_u32 s{self.SB}, s{self.SB}, {dbgoff + kidx*262144}")
            self("v_and_b32 v3, 63, v0")
            self("v_lshlrev_b32 v3, 2, v3")
            self("s_mov_b64 exec, 0xffff")
            self(f"buffer_store_dword v2, v3, s[{srd}:{srd+3}], s{self.SB} offen")
        self("s_endpgm")
    def c(self, s):
        self.lines.append("    ; " + s)
    def label(self, base):
        self.uid += 1
        return f"L_{base}_{self.uid}"
    def text(self):
        return "\n".join(self.lines) + "\n"

def V(a, n=1):
    return f"v{a}" if n == 1 else f"v[{a}:{a+n-1}]"
def S(a, n=1):
    return f"s{a}" if n == 1 else f"s[{a}:{a+n-1}]"
def A(a, n=1):
    return f"a{a}" if n == 1 else f"a[{a}:{a+n-1}]"

class Regs:
    def __init__(self, start, limit):
        self.n = start; self.limit = limit; self.hi = start
    def alloc(self, cnt=1, align=1):
        if cnt >= 2 and align == 1: align = 2
        self.n = (self.n + align - 1) // align * align
        r = self.n; self.n += cnt
        assert self.n <= self.limit, f"out of registers ({self.n} > {self.limit})"
        self.hi = max(self.hi, self.n)
        return r
    def mark(self): return self.n
    def reset(self, m): self.n = m

def kernel_header(a, name):
    a(f".globl {name}")
    a(".p2align 8")
    a(f".type {name},@function")
    a(f"{name}:")

def kernel_desc(name, nvgpr, nsgpr=96, accum=None):
    accum = accum if accum is not None else (nvgpr + 3) // 4 * 4
    return f""".p2align 6
.amdhsa_kernel {name}
  .amdhsa_next_free_vgpr {nvgpr}
  .amdhsa_next_free_sgpr {nsgpr}
  .amdhsa_accum_offset {accum}
  .amdhsa_group_segment_fixed_size 0
  .amdhsa_kernarg_size 88
  .amdhsa_user_sgpr_count 2
  .amdhsa_user_sgpr_kernarg_segment_ptr 1
  .amdhsa_system_sgpr_workgroup_id_x 1
  .amdhsa_float_denorm_mode_32 3
.end_amdhsa_kernel
"""

def srd(a, s, base, nbytes, off=0):
    if off:
        a(f"s_add_u32 s{s}, s{base}, {off}")
        a(f"s_addc_u32 s{s+1}, s{base+1}, 0")
    else:
        a(f"s_mov_b32 s{s}, s{base}")
        a(f"s_mov_b32 s{s+1}, s{base+1}")
    a(f"s_mov_b32 s{s+2}, {nbytes}")
    a(f"s_mov_b32 s{s+3}, 0x20000")
```

```python
import sys
from asmlib import *
from layout import *
import k1, k2
HEADER = open("parallel_sum__softmax_full_mha__moe_arch_mod__prompt.s.ref").read().split("; Override launch")[0]
def build(extra_launch="", instr=False):
    a = Asm()
    a.instr = instr
    n1, v1 = k1.gen_k1(a)
    n2, v2 = k2.gen_k2(a)
    out = HEADER
    out += f"; @launch kernel={n1} grid=(256,1,1) block=({k1.k1_block()},1,1) lds={k1.K1_LDS}\n"
    out += f"; @launch kernel={n2} grid=({256+NMOE},1,1) block=(512,1,1) lds={k2.K2_LDS}\n"
    out += extra_launch
    out += '.amdgcn_target "amdgcn-amd-amdhsa--gfx950"\n.text\n'
    out += a.text()
    out += '.section .rodata,"a"\n'
    for n, v in ((n1, v1), (n2, v2)):
        out += kernel_desc(n, v, 102 if instr else 80)
    print("vgprs", v1, v2, file=sys.stderr)
    return out
if __name__ == "__main__":
    path = sys.argv[1] if len(sys.argv) > 1 else "parallel_sum__softmax_full_mha__moe_arch_mod__prompt.s"
    open(path, "w").write(build())
    open("instr.s", "w").write(build(instr=1))
    open("instr2.s", "w").write(build(instr=2))
```

```python
from asmlib import *
from layout import *

STATL = 131072
K1_LDS = STATL + 2048
def k1_block(): return 64 * (5 + OPT['nld'])
SPIN = 1 << 20
NST = 10
OPT = dict(dist=2, st="", nld=4, pfw=0)

def bf16_round(a, dst, src, tmp=None):
    a(f"v_cvt_pk_bf16_f32 {V(dst)}, {V(src)}, {V(src)}")
    a(f"v_and_b32 {V(dst)}, 0xffff0000, {V(dst)}")

def finalize_stats(a, vsum, vsq, vmean, vrs, t0, t1):
    inv = f32bits(1.0 / D)
    a(f"v_mul_f32 {V(t0)}, {hex(inv)}, {V(vsum)}")
    a(f"v_mul_f32 {V(t1)}, {hex(inv)}, {V(vsq)}")
    a(f"v_fma_f32 {V(t1)}, -{V(t0)}, {V(t0)}, {V(t1)}")
    a(f"v_max_f32 {V(t1)}, 0, {V(t1)}")
    bf16_round(a, vmean, t0)
    bf16_round(a, t1, t1)
    a(f"v_add_f32 {V(t1)}, {hex(f32bits(1e-5))}, {V(t1)}")
    bf16_round(a, t1, t1)
    a(f"v_sqrt_f32 {V(t1)}, {V(t1)}")
    a("s_nop 0")
    bf16_round(a, t1, t1)
    a(f"v_rcp_f32 {V(vrs)}, {V(t1)}")
    a("s_nop 0")

def top8_rounds(a, vk, vt, vout, st, uniq):
    a("s_mov_b32 m0, 0")
    a(f"L_top8_{uniq}:")
    if len(vk) == 1:
        src = vk[0]
    else:
        src = vt
        if len(vk) == 2: a(f"v_max_u32 {V(vt)}, {V(vk[0])}, {V(vk[1])}")
        else:
            a(f"v_max3_u32 {V(vt)}, {V(vk[0])}, {V(vk[1])}, {V(vk[2])}")
            a(f"v_max_u32 {V(vt)}, {V(vt)}, {V(vk[3])}")
    for sh in (8, 4, 2, 1):
        a("s_nop 1")
        a(f"v_max_u32_dpp {V(vt)}, {V(src)}, {V(src)} row_ror:{sh} row_mask:0xf bank_mask:0xf")
        src = vt
    a("s_nop 0")
    for i in range(4):
        a(f"v_readlane_b32 s{st+i}, {V(vt)}, {16*i}")
    a(f"s_max_u32 s{st}, s{st}, s{st+1}")
    a(f"s_max_u32 s{st+2}, s{st+2}, s{st+3}")
    a(f"s_max_u32 s{st+4}, s{st}, s{st+2}")
    for i in range(0, len(vk), 2):
        a(f"v_cmp_ne_u32 vcc, s{st+4}, {V(vk[i])}")
        if i + 1 < len(vk): a(f"v_cmp_ne_u32 s[{st}:{st+1}], s{st+4}, {V(vk[i+1])}")
        if i == 0:
            a(f"v_writelane_b32 {V(vout)}, s{st+4}, m0")
            a("s_add_u32 m0, m0, 1")
        else:
            a("s_nop 1")
        a(f"v_cndmask_b32 {V(vk[i])}, 0, {V(vk[i])}, vcc")
        if i + 1 < len(vk): a(f"v_cndmask_b32 {V(vk[i+1])}, 0, {V(vk[i+1])}, s[{st}:{st+1}]")
    a("s_cmp_lt_u32 m0, 8")
    a(f"s_cbranch_scc1 L_top8_{uniq}")

def sigmoid_bf16(a, v):
    bf16_round(a, v, v)
    a(f"v_mul_f32 {V(v)}, {hex(f32bits(-1.4426950408889634))}, {V(v)}")
    a(f"v_exp_f32 {V(v)}, {V(v)}")
    a("s_nop 0")
    a(f"v_add_f32 {V(v)}, 1.0, {V(v)}")
    a(f"v_rcp_f32 {V(v)}, {V(v)}")
    a("s_nop 0")
    bf16_round(a, v, v)

def code_prefetch(a, label, nlines, spair, vtmp, vdst, uniq, back=False):
    a(f"s_getpc_b64 s[{spair}:{spair+1}]")
    a(f"L_pf_{uniq}:")
    if back:
        a(f"s_sub_u32 s{spair}, s{spair}, L_pf_{uniq}-{label}")
        a(f"s_subb_u32 s{spair+1}, s{spair+1}, 0")
    else:
        a(f"s_add_u32 s{spair}, s{spair}, {label}-L_pf_{uniq}")
        a(f"s_addc_u32 s{spair+1}, s{spair+1}, 0")
    a(f"v_min_u32 {V(vtmp)}, {nlines}-1, {V(vtmp)}")
    a(f"v_lshlrev_b32 {V(vtmp)}, 7, {V(vtmp)}")
    a(f"global_load_dword {V(vdst)}, {V(vtmp)}, s[{spair}:{spair+1}]")

def gen_k1(a):
    name = "qkv_kernel"
    ST = OPT["st"]; DIST = OPT["dist"]
    kernel_header(a, name)
    sX, sW, sWS, sWR = 4, 6, 8, 10
    sWave, sRT, sCT, sPhi, sT0, sT1, sT2 = 12, 13, 14, 15, 16, 17, 18
    rX, rW, rO = 20, 24, 28
    sSlot, sCnt, sOnes, sQS, sBA, sBB = 32, 33, 34, 35, 36, 37
    sMx, sMw, sSx, sSw, sRd = 38, 39, 40, 41, 42
    vL = 1
    a("s_cmp_ge_u32 s2, 256")
    a("s_cbranch_scc1 L1_end")
    a.stamp_init()
    END = lambda: a.end(0, rO, sWave, WS_DBG, wshift=4)
    sDbg = 46
    a(f"s_load_dwordx4 s[{sX}:{sX+3}], s[0:1], 0")
    a(f"s_load_dwordx2 s[{sWS}:{sWS+1}], s[0:1], 80")
    a(f"s_load_dwordx2 s[{sWR}:{sWR+1}], s[0:1], 32")
    a(f"s_load_dwordx2 s[{sDbg}:{sDbg+1}], s[0:1], 72")
    a(f"v_lshrrev_b32 v2, 6, v0")
    a(f"v_and_b32 {V(vL)}, 63, v0")
    a(f"v_readfirstlane_b32 s{sWave}, v2")
    a(f"s_lshr_b32 s{sT0}, s2, 3")
    if MAP["k1"]:
        a(f"s_and_b32 s{sT2}, s2, 7")
        a(f"s_and_b32 s{sT1}, s{sT0}, 1")
        a(f"s_lshr_b32 s{sCT}, s{sT0}, 1")
        a(f"s_lshl1_add_u32 s{sRT}, s{sT2}, s{sT1}")
        a(f"s_mul_i32 s{sT1}, s{sT1}, 5")
        a(f"s_add_u32 s{sT1}, s{sT1}, s{sT2}")
        a(f"s_add_u32 s{sPhi}, s{sT1}, s{sCT}")
    else:
        a(f"s_and_b32 s{sT1}, s{sT0}, 3")
        a(f"s_lshr_b32 s{sT0}, s{sT0}, 2")
        a(f"s_lshl_b32 s{sRT}, s2, 1")
        a(f"s_and_b32 s{sRT}, s{sRT}, 12")
        a(f"s_add_u32 s{sRT}, s{sRT}, s{sT1}")
        a(f"s_and_b32 s{sCT}, s2, 1")
        a(f"s_lshl_b32 s{sCT}, s{sCT}, 3")
        a(f"s_add_u32 s{sCT}, s{sCT}, s{sT0}")
        a(f"s_mul_i32 s{sT1}, s{sT1}, 5")
        a(f"s_lshr_b32 s{sT1}, s{sT1}, 1")
        a(f"s_add_u32 s{sPhi}, s{sT0}, s{sT1}")
    NLD = OPT["nld"]; NQ = 16 // NLD
    a(f"s_cmp_eq_u32 s{sWave}, {4+NLD}")
    a("s_cbranch_scc1 L1_stat")
    a(f"s_cmp_eq_u32 s{sCT}, 15")
    a("s_cbranch_scc1 L1_spare")
    a(f"s_cmp_lt_u32 s{sWave}, 4")
    a("s_cbranch_scc1 L1_cons")
    a.c("loader waves")
    vX, vWd = 4, 8
    a(f"s_mul_i32 s{sT0}, s{sPhi}, 26")
    a(f"s_lshr_b32 s{sT0}, s{sT0}, 8")
    a(f"s_mul_i32 s{sT0}, s{sT0}, 10")
    a(f"s_sub_u32 s{sPhi}, s{sPhi}, s{sT0}")
    a(f"s_sub_u32 s{sT0}, s{sWave}, 4")
    a(f"s_mul_i32 s{sMx}, s{sT0}, {1024*NQ}")
    a(f"s_mul_i32 s{sT1}, s{sRT}, {NLD}")
    a(f"s_add_u32 s{sT1}, s{sT1}, s{sT0}")
    a(f"s_mul_i32 s{sT1}, s{sT1}, {8*NQ*ROWB}")
    a(f"v_lshrrev_b32 v2, 3, {V(vL)}")
    a(f"v_mul_u32_u24 v2, {ROWB}, v2")
    a(f"v_lshrrev_b32 v3, 4, {V(vL)}")
    a(f"v_and_b32 v12, 7, {V(vL)}")
    a(f"v_xor_b32 v12, v12, v3")
    a(f"v_lshlrev_b32 v12, 4, v12")
    a(f"v_add3_u32 {V(vX)}, v2, v12, s{sT1}")
    a(f"v_xor_b32 {V(vX+1)}, 64, {V(vX)}")
    a(f"v_add_u32 {V(vX+1)}, {8*ROWB-1024}, {V(vX+1)}")
    if NQ == 4:
        a(f"v_add_u32 {V(vX+2)}, {2*(8*ROWB-1024)}, {V(vX)}")
        a(f"v_add_u32 {V(vX+3)}, {2*(8*ROWB-1024)}, {V(vX+1)}")
    a(f"s_mul_i32 s{sT1}, s{sT0}, {4*NQ*WQKV_ROWB}")
    a(f"s_lshl_b32 s{sT2}, s{sCT}, 8")
    a(f"s_add_u32 s{sT1}, s{sT1}, s{sT2}")
    a(f"v_mul_u32_u24 v2, {WQKV_ROWB}, v3")
    a(f"v_lshlrev_b32 v3, 2, v3")
    a(f"v_and_b32 v12, 15, {V(vL)}")
    a(f"v_xor_b32 v12, v12, v3")
    a(f"v_lshlrev_b32 v12, 4, v12")
    a(f"v_add3_u32 {V(vWd)}, v2, v12, s{sT1}")
    for q in range(1, NQ):
        a(f"v_add_u32 {V(vWd+q)}, {q*(4*WQKV_ROWB-1024)}, {V(vWd)}")
    a("s_waitcnt lgkmcnt(0)")
    srd(a, rX, sX, X_BYTES)
    srd(a, rW, sW, WQKV_BYTES)
    def issue():
        a(f"s_lshl_b32 s{sSx}, s{sPhi}, 7")
        a(f"s_mul_i32 s{sSw}, s{sPhi}, {64*WQKV_ROWB}")
        a(f"s_mov_b32 m0, s{sMx}")
        a(f"s_add_u32 s{sMw}, s{sMx}, 16384")
        for q in range(NQ):
            a(f"buffer_load_dwordx4 {V(vX+q)}, s[{rX}:{rX+3}], s{sSx} offen offset:{q*1024} lds")
        a(f"s_mov_b32 m0, s{sMw}")
        a(f"s_add_u32 s{sPhi}, s{sPhi}, 1")
        for q in range(NQ):
            a(f"buffer_load_dwordx4 {V(vWd+q)}, s[{rW}:{rW+3}], s{sSw} offen offset:{q*1024} lds")
        a(f"s_cmp_eq_u32 s{sPhi}, {NST}")
        a(f"s_cselect_b32 s{sPhi}, 0, s{sPhi}")
        a(f"s_add_u32 s{sMx}, s{sMx}, 32768")
        a(f"s_and_b32 s{sMx}, s{sMx}, 0x1ffff")
    a.stamp(2)
    a(f"s_mov_b32 s{sCnt}, {NST}")
    a("L1_ld_loop:")
    issue()
    a(f"s_sub_u32 s{sCnt}, s{sCnt}, 1")
    a(f"s_cmp_gt_u32 s{sCnt}, {NST-DIST}")
    a("s_cbranch_scc1 L1_ld_loop")
    a(f"s_waitcnt vmcnt({2*NQ*(DIST-1)})")
    a("s_barrier")
    a(f"s_cmp_lg_u32 s{sCnt}, 0")
    a("s_cbranch_scc1 L1_ld_loop")
    for d in range(1, DIST):
        a(f"s_waitcnt vmcnt({2*NQ*(DIST-1-d)})")
        a("s_barrier")
    a.stamp(4)
    if OPT["pfw"]:
        a("s_load_dwordx4 s[48:51], s[0:1], 40")
        a("s_load_dwordx2 s[52:53], s[0:1], 56")
        a(f"s_mul_i32 s{sT0}, s{sRT}, 15")
        a(f"s_add_u32 s{sT0}, s{sT0}, s{sCT}")
        a(f"s_mul_i32 s{sT0}, s{sT0}, {72*128}")
        a(f"s_sub_u32 s{sT1}, s{sWave}, 4")
        a(f"s_mul_i32 s{sT1}, s{sT1}, {18*128}")
        a(f"s_add_u32 s{sT0}, s{sT0}, s{sT1}")
        a(f"v_min_u32 v3, 17, {V(vL)}")
        a(f"v_lshl_add_u32 v3, v3, 7, s{sT0}")
        a("s_waitcnt lgkmcnt(0)")
        a("s_mov_b64 exec, 0x3ffff")
        for p in (48, 50, 52):
            a(f"global_load_dword v4, v3, s[{p}:{p+1}]")
        a("s_mov_b64 exec, -1")
    a(f"v_subrev_u32 v3, 256, v0")
    code_prefetch(a, "attn_kernel", "((L2_codeend-attn_kernel+127)/128)", 44, 3, 4, "k2")
    if a.instr: srd(a, rO, sWS, WS_END)
    END()

    a("L1_stat:")
    u = list(range(2, 10)); pk = 12
    sS, sQ, sR = [16, 17], [18, 19], [20, 21]; sWsum = 22
    xg, wr = 24, 64
    a("s_setprio 3")
    a(f"s_mov_b32 s{sOnes}, 0x3f803f80")
    a(f"s_lshl4_add_u32 s{sT0}, s{sRT}, s{sCT}")
    a(f"s_lshl_b32 s{sT0}, s{sT0}, 3")
    a(f"v_lshrrev_b32 {V(u[0])}, 4, {V(vL)}")
    a(f"v_add_u32 {V(u[0])}, s{sT0}, {V(u[0])}")
    a(f"v_mul_u32_u24 {V(u[1])}, {ROWB}, {V(u[0])}")
    a(f"v_and_b32 {V(u[2])}, 15, {V(vL)}")
    a(f"v_lshlrev_b32 {V(u[2])}, 4, {V(u[2])}")
    a(f"v_add_u32 {V(u[1])}, {V(u[1])}, {V(u[2])}")
    a(f"s_mov_b32 s{sT1}, {4*ROWB}")
    a("s_waitcnt lgkmcnt(0)")
    srd(a, rX, sX, X_BYTES)
    srd(a, rW, sWR, ROWB)
    for i in range(5):
        a(f"buffer_load_dwordx4 {V(wr+4*i,4)}, {V(u[2])}, s[{rW}:{rW+3}], 0 offen offset:{256*i}")
    for g in range(2):
        for i in range(5):
            a(f"buffer_load_dwordx4 {V(xg+20*g+4*i,4)}, {V(u[1])}, s[{rX}:{rX+3}], {'0' if g == 0 else f's{sT1}'} offen offset:{256*i}")
    srd(a, rO, sWS, WS_END)
    for r in sS + sQ + sR + [sWsum]: a(f"v_mov_b32 {V(r)}, 0")
    a.stamp(2)
    a("s_waitcnt vmcnt(10)")
    for r in range(20):
        a(f"v_dot2c_f32_bf16 {V(sWsum)}, s{sOnes}, {V(wr+r)}")
    for g in range(2):
        for i in range(5):
            a(f"s_waitcnt vmcnt({9-5*g-i})")
            for r in range(4*i, 4*i+4):
                x = xg + 20*g + r
                a(f"v_dot2c_f32_bf16 {V(sS[g])}, s{sOnes}, {V(x)}")
                a(f"v_dot2c_f32_bf16 {V(sQ[g])}, {V(x)}, {V(x)}")
                a(f"v_dot2c_f32_bf16 {V(sR[g])}, {V(wr+r)}, {V(x)}")
    a.stamp(3)
    a(f"s_cmp_eq_u32 s{sCT}, 15")
    a("s_cbranch_scc1 L1_st_nb0")
    a("s_barrier")
    a("L1_st_nb0:")
    a(f"v_and_b32 {V(u[3])}, 1, {V(vL)}")
    a(f"v_cmp_eq_u32 vcc, 1, {V(u[3])}")
    a(f"v_lshl_add_u32 {V(u[0])}, {V(u[3])}, 2, {V(u[0])}")
    for sh in (8, 4, 2, 1):
        for v in sS + sQ + sR + [sWsum]:
            a(f"v_add_f32_dpp {V(v)}, {V(v)}, {V(v)} row_ror:{sh} row_mask:0xf bank_mask:0xf")
    for p in (sS, sQ, sR):
        a(f"v_cndmask_b32 {V(p[0])}, {V(p[0])}, {V(p[1])}, vcc")
    finalize_stats(a, sS[0], sQ[0], pk, pk+1, u[3], u[4])
    a(f"v_fma_f32 {V(sR[0])}, -{V(pk)}, {V(sWsum)}, {V(sR[0])}")
    a(f"v_mul_f32 {V(pk+2)}, {V(pk+1)}, {V(sR[0])}")
    a(f"v_ashrrev_i32 {V(u[3])}, 31, {V(pk+2)}")
    a(f"v_or_b32 {V(u[3])}, 0x80000000, {V(u[3])}")
    a(f"v_xor_b32 {V(u[3])}, {V(u[3])}, {V(pk+2)}")
    a(f"v_and_b32 {V(u[3])}, 0xfffff800, {V(u[3])}")
    a(f"v_sub_u32 {V(u[4])}, 2047, {V(u[0])}")
    a(f"v_or_b32 {V(pk+3)}, {V(u[3])}, {V(u[4])}")
    a(f"v_lshlrev_b32 {V(u[3])}, 4, {V(u[0])}")
    a(f"s_mov_b32 s{sT1}, {WS_STAT}")
    a(f"s_lshl_b32 s{sT2}, s{sRT}, 4")
    a(f"v_mov_b32 {V(u[4])}, s{sT2}")
    a(f"v_mov_b32 {V(u[5])}, 1")
    a("s_mov_b32 exec_lo, 0x00030003")
    a("s_mov_b32 exec_hi, 0x00030003")
    a(f"buffer_store_dwordx4 {V(pk,4)}, {V(u[3])}, s[{rO}:{rO+3}], s{sT1} offen sc1")
    a("s_mov_b64 exec, 1")
    a(f"s_cmp_eq_u32 s{sCT}, 15")
    a("s_cbranch_scc1 L1_st_nb1")
    a("s_barrier")
    a("L1_st_nb1:")
    a("s_waitcnt vmcnt(0)")
    a(f"global_atomic_add {V(u[4])}, {V(u[5])}, s[{sDbg}:{sDbg+1}] sc1")
    a("s_mov_b64 exec, -1")
    a.stamp(4)
    a("s_cbranch_scc1 L1_st_end")
    for k in range(2, 6): a("s_barrier")
    a(f"s_mov_b32 s{sCnt}, {SPIN}")
    a(f"global_load_dword {V(u[5])}, {V(u[4])}, s[{sDbg}:{sDbg+1}] sc1")
    a("s_barrier")
    a("s_branch L1_st_chk")
    a("L1_st_poll:")
    a(f"global_load_dword {V(u[5])}, {V(u[4])}, s[{sDbg}:{sDbg+1}] sc1")
    a(f"s_sub_u32 s{sCnt}, s{sCnt}, 1")
    a("s_cbranch_scc1 L1_st_go")
    a("L1_st_chk:")
    a("s_waitcnt vmcnt(0)")
    a(f"v_readfirstlane_b32 s{sT2}, {V(u[5])}")
    a(f"s_cmp_lt_u32 s{sT2}, 16")
    a("s_cbranch_scc1 L1_st_poll")
    a("L1_st_go:")
    a.stamp(5)
    a(f"s_lshl_b32 s{sT2}, s{sRT}, 11")
    a(f"s_add_u32 s{sT1}, s{sT1}, s{sT2}")
    a(f"v_lshlrev_b32 {V(u[3])}, 4, {V(vL)}")
    a(f"buffer_load_dwordx2 {V(xg,2)}, {V(u[3])}, s[{rO}:{rO+3}], s{sT1} offen sc1")
    a(f"buffer_load_dwordx2 {V(xg+2,2)}, {V(u[3])}, s[{rO}:{rO+3}], s{sT1} offen offset:1024 sc1")
    a(f"v_lshlrev_b32 {V(u[3])}, 2, {V(vL)}")
    a(f"v_add_u32 {V(u[3])}, {STATL}, {V(u[3])}")
    a("s_barrier")
    a("s_barrier")
    a("s_waitcnt vmcnt(0)")
    a(f"ds_write2st64_b32 {V(u[3])}, {V(xg)}, {V(xg+2)} offset0:0 offset1:1")
    a(f"ds_write2st64_b32 {V(u[3])}, {V(xg+1)}, {V(xg+3)} offset0:2 offset1:3")
    a("s_barrier")
    a("s_waitcnt lgkmcnt(0)")
    a("s_barrier")
    a("L1_st_end:")
    END()

    a("L1_cons:")
    R = Regs(2, 256)
    t = [R.alloc() for _ in range(6)]
    vTok = R.alloc()
    xb = [[R.alloc() for s in range(4)]]
    wb = [R.alloc() for wt in range(2)]
    xa = [[R.alloc() for s in range(4)]]
    wa = [R.alloc() for wt in range(2)]
    oaddr = [R.alloc() for wt in range(2)]
    sel = R.alloc(4, 4); cs = R.alloc(4, 4)
    fx = [[R.alloc(4, 4) for xt in range(2)] for st in range(2)]
    fw = [[R.alloc(4, 4) for wt in range(2)] for st in range(2)]
    acc = [[R.alloc(16, 4) for wt in range(2)] for xt in range(2)]
    ep = fx[0][0]
    e2 = sel
    sWi, sWj = 43, 44
    a(f"s_lshr_b32 s{sWi}, s{sWave}, 1")
    a(f"s_and_b32 s{sWj}, s{sWave}, 1")
    a(f"s_lshl_b32 s{sT0}, s{sRT}, 2")
    a(f"s_lshl_b32 s{sT1}, s{sWi}, 1")
    a(f"s_add_u32 s{sBA}, s{sT0}, s{sT1}")
    for xt in range(2):
        for wt in range(2):
            for r in range(16):
                a(f"v_mov_b32 {V(acc[xt][wt]+r)}, 0")
    for r in range(4): a(f"v_mov_b32 {V(cs+r)}, 0")
    vH = t[0]
    a(f"v_lshrrev_b32 {V(vH)}, 5, {V(vL)}")
    a(f"v_lshrrev_b32 {V(t[1])}, 4, {V(vL)}")
    a(f"v_xor_b32 {V(t[1])}, {V(t[1])}, {V(vL)}")
    a(f"v_and_b32 {V(t[1])}, 1, {V(t[1])}")
    a(f"v_cmp_eq_u32 vcc, 0, {V(t[1])}")
    a(f"v_mov_b32 {V(t[2])}, 0x3f803f80")
    a(f"v_bfe_u32 {V(t[1])}, {V(vL)}, 2, 2")
    for r in range(4): a(f"v_cndmask_b32 {V(sel+r)}, 0, {V(t[2])}, vcc")
    a(f"v_bfe_u32 {V(t[2])}, {V(vL)}, 4, 1")
    a(f"v_bfe_u32 {V(t[3])}, {V(vL)}, 1, 1")
    a(f"v_lshl_add_u32 {V(t[2])}, {V(t[2])}, 1, {V(t[3])}")
    a(f"s_lshl_b32 s{sT0}, s{sWj}, 1")
    a(f"s_add_u32 s{sT0}, s{sT0}, s{sWi}")
    a(f"v_xor_b32 {V(t[3])}, s{sT0}, {V(t[1])}")
    a(f"v_lshl_add_u32 {V(t[2])}, {V(t[3])}, 2, {V(t[2])}")
    a(f"v_lshl_add_u32 {V(t[3])}, {V(vH)}, 3, {V(t[1])}")
    a(f"v_lshlrev_b32 {V(t[3])}, 8, {V(t[3])}")
    a(f"v_lshl_add_u32 {V(t[3])}, {V(t[2])}, 4, {V(t[3])}")
    a(f"v_and_b32 {V(t[2])}, 1, {V(vL)}")
    a(f"v_lshl_add_u32 {V(t[3])}, {V(t[2])}, 3, {V(t[3])}")
    a(f"v_add_u32 {V(wb[0])}, 16384, {V(t[3])}")
    a(f"v_xor_b32 {V(wb[1])}, 64, {V(wb[0])}")
    a(f"v_and_b32 {V(vTok)}, 31, {V(vL)}")
    a("s_waitcnt lgkmcnt(0)")
    srd(a, rO, sWS, WS_END)
    a(f"s_cmp_ge_u32 s{sCT}, 10")
    a("s_cbranch_scc1 L1_consV")

    def xaddrs():
        a(f"s_lshl_b32 s{sT1}, s{sWi}, 13")
        a(f"v_lshl_add_u32 {V(t[1])}, {V(vTok)}, 7, s{sT1}")
        a(f"v_bfe_u32 {V(t[2])}, {V(vTok)}, 1, 3")
        a(f"v_xor_b32 {V(t[2])}, {V(t[2])}, {V(vH)}")
        a(f"v_lshl_add_u32 {V(xb[0][0])}, {V(t[2])}, 4, {V(t[1])}")
        for s in range(1, 4):
            a(f"v_xor_b32 {V(xb[0][s])}, {32*s}, {V(xb[0][0])}")

    def set_addrs():
        for s in range(4):
            a(f"v_add_u32 {V(xa[0][s])}, s{sSlot}, {V(xb[0][s])}")
        for wt in range(2):
            a(f"v_add_u32 {V(wa[wt])}, s{sSlot}, {V(wb[wt])}")

    def rd(st, s, k):
        if k in (0, 5):
            xt = k // 5
            a(f"ds_read_b128 {V(fx[st][xt],4)}, {V(xa[0][s])} offset:{4096*xt}")
        else:
            wt, tt = (k - 1) // 2, (k - 1) % 2
            a(f"ds_read_b64_tr_b16 {V(fw[st][wt]+2*tt,2)}, {V(wa[wt])} offset:{s*4096+1024*tt}")

    def M(st, xt, wt, isV):
        A_, B_ = (fx[st][xt], fw[st][wt]) if isV else (fw[st][wt], fx[st][xt])
        a(f"v_mfma_f32_32x32x16_bf16 {V(acc[xt][wt],16)}, {V(A_,4)}, {V(B_,4)}, {V(acc[xt][wt],16)}")
    def MC(st):
        a(f"v_mfma_f32_16x16x32_bf16 {V(cs,4)}, {V(fw[st][0],4)}, {V(sel,4)}, {V(cs,4)}")

    def mainloop(isV):
        lab = "V" if isV else "Q"
        a(f"s_mov_b32 s{sSlot}, 0")
        a(f"s_mov_b32 s{sCnt}, {NST}")
        set_addrs()
        a.stamp(2)
        a("s_barrier")
        a.stamp(3)
        a.stamp_cyc(8)
        for k in range(6): rd(0, 0, k)
        a(f"L1_loop{lab}:")
        for s in range(3):
            st, nx = s % 2, (s + 1) % 2
            a("s_waitcnt lgkmcnt(3)")
            M(st, 0, 0, isV)
            rd(nx, s + 1, 0); rd(nx, s + 1, 1)
            a("s_waitcnt lgkmcnt(3)")
            M(st, 0, 1, isV)
            rd(nx, s + 1, 2); rd(nx, s + 1, 3)
            a("s_waitcnt lgkmcnt(4)")
            M(st, 1, 0, isV)
            rd(nx, s + 1, 4); rd(nx, s + 1, 5)
            M(st, 1, 1, isV)
            if s == 2:
                a(f"s_add_u32 s{sSlot}, s{sSlot}, 32768")
                a(f"s_and_b32 s{sSlot}, s{sSlot}, 0x1ffff")
                a(f"s_sub_u32 s{sCnt}, s{sCnt}, 1")
                set_addrs()
                a(f"s_cmp_eq_u32 s{sCnt}, 0")
            MC(st)
        a(f"s_cbranch_scc1 L1_last{lab}")
        a("s_waitcnt lgkmcnt(3)")
        M(1, 0, 0, isV)
        a("s_waitcnt lgkmcnt(0)")
        a("s_barrier")
        rd(0, 0, 0); rd(0, 0, 1)
        M(1, 0, 1, isV)
        rd(0, 0, 2); rd(0, 0, 3)
        M(1, 1, 0, isV)
        rd(0, 0, 4); rd(0, 0, 5)
        M(1, 1, 1, isV)
        MC(1)
        a(f"s_branch L1_loop{lab}")
        a(f"L1_last{lab}:")
        a.stamp(4)
        a.stamp_cyc(9)
        a("s_waitcnt lgkmcnt(3)")
        MC(1)
        M(1, 0, 0, isV)
        a("s_waitcnt lgkmcnt(0)")
        M(1, 0, 1, isV); M(1, 1, 0, isV); M(1, 1, 1, isV)
        a(f"s_lshl_b32 s{sT0}, s{sWj}, 1")
        a(f"s_add_u32 s{sT0}, s{sT0}, s{sWi}")
        a(f"s_lshl_b32 s{sT0}, s{sT0}, 7")
        a(f"v_lshrrev_b32 {V(t[1])}, 4, {V(vL)}")
        a(f"v_lshlrev_b32 {V(t[1])}, 4, {V(t[1])}")
        a(f"v_and_b32 {V(t[2])}, 1, {V(vL)}")
        a(f"v_lshl_add_u32 {V(t[1])}, {V(t[2])}, 6, {V(t[1])}")
        a(f"s_add_u32 s{sT0}, s{sT0}, {STATL}")
        a(f"v_add_u32 {V(t[1])}, s{sT0}, {V(t[1])}")
        a(f"ds_write_b128 {V(t[1])}, {V(cs,4)} offset:1024")
        a("s_waitcnt lgkmcnt(0)")
        a("s_barrier")
        a.stamp(5)

    xaddrs()
    sBS, sBase = 45, 48
    a(f"s_mov_b32 s{sBS}, {KVB}")
    a(f"s_cmp_lt_u32 s{sCT}, 5")
    a(f"s_cmov_b32 s{sBS}, {PB}")
    a(f"s_cselect_b32 s{sBase}, {WS_Q}, {WS_KV}")
    a(f"s_cselect_b32 s{sQS}, {hex(f32bits(QSCALE))}, 1.0")
    a(f"s_cselect_b32 s{sT1}, 0, 5")
    a(f"s_sub_u32 s{sT1}, s{sCT}, s{sT1}")
    a(f"s_lshl_b32 s{sT1}, s{sT1}, 2")
    a(f"s_add_u32 s{sT1}, s{sT1}, s{sT0}")
    a(f"s_lshl_b32 s{sT1}, s{sT1}, 11")
    a(f"v_lshl_add_u32 {V(oaddr[0])}, {V(vL)}, 4, s{sT1}")
    a(f"v_xor_b32 {V(oaddr[1])}, 0x800, {V(oaddr[0])}")
    a(f"s_mul_i32 s{sBA}, s{sBA}, s{sBS}")
    a(f"s_add_u32 s{sBA}, s{sBA}, s{sBase}")
    a(f"s_add_u32 s{sBB}, s{sBA}, s{sBS}")
    mainloop(False)
    a(f"s_lshl_b32 s{sT1}, s{sWi}, 8")
    a(f"s_add_u32 s{sT1}, s{sT1}, {STATL}")
    a(f"v_lshl_add_u32 {V(t[1])}, {V(vTok)}, 2, s{sT1}")
    a(f"ds_read2_b32 {V(e2,2)}, {V(t[1])} offset0:0 offset1:32")
    a(f"ds_read2_b32 {V(e2+2,2)}, {V(t[1])} offset0:128 offset1:160")
    a(f"v_lshl_add_u32 {V(t[2])}, {V(vH)}, 4, s{sT0}")
    a(f"v_xor_b32 {V(t[3])}, 128, {V(t[2])}")
    for wt in range(2):
        for q in range(4):
            a(f"ds_read_b128 {V(ep+16*wt+4*q,4)}, {V(t[2+wt])} offset:{1024+32*q}")
    a("s_waitcnt lgkmcnt(8)")
    a(f"v_mul_f32 {V(e2+2)}, s{sQS}, {V(e2+2)}")
    a(f"v_mul_f32 {V(e2+3)}, s{sQS}, {V(e2+3)}")
    for wt in range(2):
        a(f"s_waitcnt lgkmcnt({4-4*wt})")
        for xt in range(2):
            ac = acc[xt][wt]
            for r in range(0, 16, 2):
                a(f"v_pk_fma_f32 {V(ac+r,2)}, {V(e2,2)}, {V(ep+16*wt+r,2)}, {V(ac+r,2)} op_sel:[{xt},0,0] op_sel_hi:[{xt},1,1] neg_lo:[1,0,0] neg_hi:[1,0,0]")
            for r in range(0, 16, 2):
                a(f"v_pk_mul_f32 {V(ac+r,2)}, {V(e2+2,2)}, {V(ac+r,2)} op_sel:[{xt},0] op_sel_hi:[{xt},1]")
            for r in range(8):
                a(f"v_cvt_pk_bf16_f32 {V(ac+r)}, {V(ac+2*r)}, {V(ac+2*r+1)}")
            a("s_nop 0")
            for (p, q_) in ((0, 2), (1, 3), (4, 6), (5, 7)):
                a(f"v_permlane32_swap_b32 {V(ac+p)}, {V(ac+q_)}")
            for i in range(2):
                a(f"buffer_store_dwordx4 {V(ac+4*i,4)}, {V(oaddr[wt])}, s[{rO}:{rO+3}], s{sBA if xt==0 else sBB} offen offset:{1024*i} {ST}")
    a.stamp(6)
    END()

    a("L1_consV:")
    a(f"v_bfe_u32 {V(t[1])}, {V(vTok)}, 2, 1")
    a(f"v_bfe_u32 {V(t[2])}, {V(vTok)}, 3, 1")
    a(f"v_and_b32 {V(vTok)}, 0x13, {V(vTok)}")
    a(f"v_lshl_add_u32 {V(vTok)}, {V(t[1])}, 3, {V(vTok)}")
    a(f"v_lshl_add_u32 {V(vTok)}, {V(t[2])}, 2, {V(vTok)}")
    xaddrs()
    a(f"s_sub_u32 s{sT1}, s{sCT}, 10")
    a(f"s_lshl_b32 s{sT1}, s{sT1}, 2")
    a(f"s_add_u32 s{sT1}, s{sT1}, s{sT0}")
    a(f"s_lshl_b32 s{sT1}, s{sT1}, 5")
    a(f"s_mul_i32 s{sBA}, s{sBA}, {KVB}")
    a(f"s_add_u32 s{sBB}, s{sBA}, {KVB}")
    a(f"v_and_b32 {V(t[4])}, 31, {V(vL)}")
    a(f"v_mul_u32_u24 {V(t[5])}, {VG}, {V(vH)}")
    a(f"v_add_u32 {V(t[5])}, {WS_KV+PB}, {V(t[5])}")
    for wt in range(2):
        if wt == 1: a(f"s_xor_b32 s{sT1}, s{sT1}, 32")
        a(f"v_add_u32 {V(t[1])}, s{sT1}, {V(t[4])}")
        a(f"v_mul_u32_u24 {V(t[2])}, 3277, {V(t[1])}")
        a(f"v_lshrrev_b32 {V(t[2])}, 16, {V(t[2])}")
        a(f"v_mul_u32_u24 {V(t[2])}, {VH-20*16}, {V(t[2])}")
        a(f"v_lshl_add_u32 {V(t[1])}, {V(t[1])}, 4, {V(t[5])}")
        a(f"v_add_u32 {V(oaddr[wt])}, {V(t[1])}, {V(t[2])}")
    mainloop(True)
    a(f"v_lshl_add_u32 {V(t[2])}, {V(t[4])}, 2, s{sT0}")
    a(f"v_xor_b32 {V(t[3])}, 128, {V(t[2])}")
    a(f"ds_read_b32 {V(e2)}, {V(t[2])} offset:1024")
    a(f"ds_read_b32 {V(e2+1)}, {V(t[3])} offset:1024")
    a(f"s_lshl_b32 s{sT1}, s{sWi}, 8")
    a(f"s_add_u32 s{sT1}, s{sT1}, {STATL}")
    a(f"v_lshl_add_u32 {V(t[1])}, {V(vH)}, 5, s{sT1}")
    for xt in range(2):
        for k in range(4):
            off = (k // 2) * 64 + (k % 2) * 16 + 128 * xt
            a(f"ds_read_b128 {V(ep+4*k,4)}, {V(t[1])} offset:{off}")
            a(f"ds_read_b128 {V(ep+16+4*k,4)}, {V(t[1])} offset:{512+off}")
        a("s_waitcnt lgkmcnt(0)")
        for wt in range(2):
            ac = acc[xt][wt]
            for r in range(0, 16, 2):
                a(f"v_pk_fma_f32 {V(ac+r,2)}, {V(e2,2)}, {V(ep+r,2)}, {V(ac+r,2)} op_sel:[{wt},0,0] op_sel_hi:[{wt},1,1] neg_lo:[1,0,0] neg_hi:[1,0,0]")
            for r in range(0, 16, 2):
                a(f"v_pk_mul_f32 {V(ac+r,2)}, {V(ep+16+r,2)}, {V(ac+r,2)}")
            for r in range(8):
                a(f"v_cvt_pk_bf16_f32 {V(ac+r)}, {V(ac+2*r)}, {V(ac+2*r+1)}")
            for m in range(2):
                a(f"buffer_store_dwordx4 {V(ac+4*m,4)}, {V(oaddr[wt])}, s[{rO}:{rO+3}], s{sBA if xt==0 else sBB} offen offset:{m*2*VG} {ST}")
    a.stamp(6)
    END()

    a("L1_spare:")
    if NLD > 4:
        a(f"s_cmp_ge_u32 s{sWave}, 8")
        a("s_cbranch_scc1 L1_end")
    u = list(range(2, 10)); cz = 12; kk = 20
    a("s_waitcnt lgkmcnt(0)")
    srd(a, rO, sWS, WS_END)
    a(f"v_lshrrev_b32 {V(u[4])}, 7, v0")
    a(f"s_mov_b32 s{sT1}, {KVB}")
    a(f"v_mul_lo_u32 {V(u[4])}, {V(u[4])}, s{sT1}")
    a(f"v_and_b32 {V(u[5])}, 127, v0")
    a(f"v_mul_u32_u24 {V(u[5])}, {VG}, {V(u[5])}")
    a(f"v_add_u32 {V(u[4])}, {V(u[4])}, {V(u[5])}")
    a(f"s_mul_i32 s{sT1}, s{sRT}, {4*KVB}")
    a(f"s_add_u32 s{sT1}, s{sT1}, {WS_KV+PB+320}")
    for i in range(4):
        a(f"v_mov_b32 {V(cz+i)}, 0x3f803f80")
        a(f"v_mov_b32 {V(cz+4+i)}, 0")
    a(f"buffer_store_dwordx4 {V(cz,4)}, {V(u[4])}, s[{rO}:{rO+3}], s{sT1} offen {ST}")
    a(f"buffer_store_dwordx4 {V(cz+4,4)}, {V(u[4])}, s[{rO}:{rO+3}], s{sT1} offen offset:16 {ST}")
    a(f"s_cmp_lg_u32 s{sRT}, 0")
    a("s_cbranch_scc1 L1_end")
    a(f"v_min_u32 {V(u[4])}, {NCNT-1}, v0")
    a(f"v_lshlrev_b32 {V(u[4])}, 7, {V(u[4])}")
    a(f"s_mov_b32 s{sT1}, {WS_CNT}")
    a(f"buffer_store_dword {V(cz+4)}, {V(u[4])}, s[{rO}:{rO+3}], s{sT1} offen")
    a(f"s_cmp_lg_u32 s{sWave}, 0")
    a("s_cbranch_scc1 L1_sp_wait")
    a(f"v_mov_b32 {V(kk)}, -1")
    a(f"v_mov_b32 {V(kk+1)}, 0")
    a(f"ds_write_b64 {V(kk+1)}, {V(kk,2)}")
    a(f"v_lshlrev_b32 {V(kk+2)}, 2, {V(vL)}")
    a(f"ds_write_b32 {V(kk+2)}, {V(kk+1)} offset:16")
    a(f"ds_write_b32 {V(kk+2)}, {V(kk+1)} offset:12288")
    a(f"v_and_b32 {V(u[0])}, 15, {V(vL)}")
    a(f"v_lshlrev_b32 {V(u[0])}, 4, {V(u[0])}")
    a(f"s_mov_b32 s{sCnt}, {SPIN}")
    a("L1_sp_poll:")
    a("s_sleep 8")
    a(f"global_load_dword {V(u[1])}, {V(u[0])}, s[{sDbg}:{sDbg+1}] sc1")
    a(f"s_sub_u32 s{sCnt}, s{sCnt}, 1")
    a("s_cbranch_scc1 L1_sp_wait")
    a("s_waitcnt vmcnt(0)")
    a(f"v_cmp_gt_u32 vcc, 16, {V(u[1])}")
    a("s_cbranch_vccnz L1_sp_poll")
    a("L1_sp_wait:")
    a("s_waitcnt lgkmcnt(0)")
    a("s_barrier")
    a.stamp(2)
    a(f"v_lshlrev_b32 {V(u[0])}, 4, v0")
    a(f"s_mov_b32 s{sT1}, {WS_STAT+12}")
    for i in range(4):
        a(f"buffer_load_dword {V(kk+i)}, {V(u[0])}, s[{rO}:{rO+3}], s{sT1} offen sc1")
        if i < 3: a(f"s_add_u32 s{sT1}, s{sT1}, 8192")
    a("s_waitcnt vmcnt(0)")
    a.stamp(3)
    a(f"v_max3_u32 {V(u[1])}, {V(kk)}, {V(kk+1)}, {V(kk+2)}")
    a(f"v_max_u32 {V(u[1])}, {V(u[1])}, {V(kk+3)}")
    for sh in (8, 4, 2, 1):
        a("s_nop 1")
        a(f"v_max_u32_dpp {V(u[1])}, {V(u[1])}, {V(u[1])} row_ror:{sh} row_mask:0xf bank_mask:0xf")
    a("s_nop 0")
    for i in range(4): a(f"v_readlane_b32 s{56+i}, {V(u[1])}, {16*i}")
    a("s_max_u32 s56, s56, s57")
    a("s_max_u32 s58, s58, s59")
    a("s_max_u32 s56, s56, s58")
    a(f"v_mov_b32 {V(u[1])}, s56")
    a(f"v_mov_b32 {V(u[3])}, 0")
    a("s_mov_b64 exec, 1")
    a(f"ds_min_u32 {V(u[3])}, {V(u[1])}")
    a("s_mov_b64 exec, -1")
    a("s_waitcnt lgkmcnt(0)")
    a("s_barrier")
    a(f"ds_read_b32 {V(u[1])}, {V(u[3])}")
    a(f"v_mov_b32 {V(u[4])}, 1")
    a("s_waitcnt lgkmcnt(0)")
    for i in range(4):
        a(f"v_cmp_ge_u32 vcc, {V(kk+i)}, {V(u[1])}")
        a(f"s_and_saveexec_b64 s[56:57], vcc")
        a(f"s_cbranch_execz L1_sp_c{i}")
        a(f"ds_add_rtn_u32 {V(u[5])}, {V(u[3])}, {V(u[4])} offset:4")
        a("s_waitcnt lgkmcnt(0)")
        a(f"v_lshlrev_b32 {V(u[5])}, 2, {V(u[5])}")
        a(f"ds_write_b32 {V(u[5])}, {V(kk+i)} offset:16")
        a(f"L1_sp_c{i}:")
        a("s_mov_b64 exec, s[56:57]")
    a("s_waitcnt lgkmcnt(0)")
    a("s_barrier")
    RK = 12288
    a(f"ds_read_b32 {V(u[1])}, {V(u[3])} offset:4")
    a(f"v_lshlrev_b32 {V(u[0])}, 2, {V(vL)}")
    a(f"ds_read_b32 {V(u[2])}, {V(u[0])} offset:16")
    a(f"s_lshl_b32 s{sT2}, s{sWave}, 5")
    a(f"v_mov_b32 {V(u[5])}, s{sT2}")
    a(f"ds_read_b128 {V(cz,4)}, {V(u[5])} offset:16")
    a(f"ds_read_b128 {V(cz+4,4)}, {V(u[5])} offset:32")
    a(f"s_mov_b32 s{sT1}, {WS_SEL}")
    a(f"v_mov_b32 {V(u[4])}, 0")
    a("s_waitcnt lgkmcnt(0)")
    a(f"v_readfirstlane_b32 s{sCnt}, {V(u[1])}")
    a.stamp(4)
    for i in range(8):
        a(f"v_cmp_gt_u32 s[{48+2*i}:{49+2*i}], {V(cz+i)}, {V(u[2])}")
    a(f"s_cmp_gt_u32 s{sCnt}, 64")
    a("s_cbranch_scc1 L1_sp_slow")
    for i in range(8):
        a(f"v_addc_co_u32 {V(u[4])}, vcc, 0, {V(u[4])}, s[{48+2*i}:{49+2*i}]")
    a(f"ds_add_u32 {V(u[0])}, {V(u[4])} offset:{RK}")
    a("s_waitcnt lgkmcnt(0)")
    a("s_barrier")
    a(f"s_cmp_lg_u32 s{sWave}, 0")
    a("s_cbranch_scc1 L1_end")
    a(f"ds_read_b32 {V(u[4])}, {V(u[0])} offset:{RK}")
    a("s_waitcnt lgkmcnt(0)")
    a(f"v_cmp_gt_u32 vcc, 8, {V(u[4])}")
    a(f"v_lshlrev_b32 {V(u[0])}, 2, {V(u[4])}")
    a("s_and_b64 exec, exec, vcc")
    a("L1_sp_store:")
    a(f"v_and_b32 {V(u[2])}, 0x7ff, {V(u[2])}")
    a(f"v_sub_u32 {V(u[2])}, 2047, {V(u[2])}")
    a(f"buffer_store_dword {V(u[2])}, {V(u[0])}, s[{rO}:{rO+3}], s{sT1} offen sc1")
    END()
    a("L1_sp_slow:")
    a("s_barrier")
    top8_rounds(a, [kk, kk+1, kk+2, kk+3], u[1], u[2], 56, "a")
    a(f"s_lshl_b32 s{sT2}, s{sWave}, 5")
    a(f"v_add_u32 {V(u[3])}, s{sT2}, {V(u[0])}")
    a("s_mov_b64 exec, 0xff")
    a(f"ds_write_b32 {V(u[3])}, {V(u[2])}")
    a("s_mov_b64 exec, -1")
    a("s_waitcnt lgkmcnt(0)")
    a("s_barrier")
    a(f"s_cmp_lg_u32 s{sWave}, 0")
    a("s_cbranch_scc1 L1_end")
    a(f"ds_read_b32 {V(kk)}, {V(u[0])}")
    a("s_waitcnt lgkmcnt(0)")
    top8_rounds(a, [kk], u[1], u[2], 56, "b")
    a("s_mov_b64 exec, 0xff")
    a("s_branch L1_sp_store")
    a("L1_end:")
    a("s_endpgm")
    return name, max(R.hi, 100)
```

```python
from asmlib import *
from layout import *
from k1 import bf16_round, code_prefetch, sigmoid_bf16

K2_LDS = 81920
TILE = 8 * BLK
SPIN = 1 << 20
OPT = dict(prio=1, mprio=0, mprio1=2, mprio2=2, thr=2, touch=1, ost="")

P3S = (43, 44, 45, 46, 47, 68)

def gen_p3(a, END, sWS, sX, sWO, sOut, sSel, sWave, sHead, sQb, rW, vL):
    rX, rWO, rOut, rO = 8, 56, 60, 64
    sT0, sT1, sT2, sAny, sPh, sSo, sOb, sM = 19, 20, 21, 25, 28, 29, 30, 32
    sRow, sCol, sNr, sKh, sTb, sXo = P3S
    t = [2, 3, 4, 5, 6, 7]
    vHi, vA, vP = 8, [9, 10], [14, 15]
    vXo, vTok, vSt, xl = 11, 12, 122, 112
    res, acc, wf, of = 16, [32, 64], [80, 88], 96
    OFS = [96, 112, 48]
    xr, xn = 32, 64
    vN = t[5]
    a(f"s_cmp_ge_u32 s{sHead}, 30")
    a("s_cbranch_scc1 L3_notile")
    a(f"v_lshrrev_b32 {V(t[0])}, 3, {V(vL)}")
    a(f"v_mul_u32_u24 {V(t[0])}, {ROWB}, {V(t[0])}")
    a(f"v_bfe_u32 {V(t[1])}, {V(vL)}, 4, 1")
    a(f"v_lshlrev_b32 {V(t[1])}, 2, {V(t[1])}")
    a(f"v_and_b32 {V(t[2])}, 7, {V(vL)}")
    a(f"v_xor_b32 {V(t[1])}, {V(t[1])}, {V(t[2])}")
    a(f"v_lshl_add_u32 {V(t[0])}, {V(t[1])}, 4, {V(t[0])}")
    a(f"s_lshl_b32 s{sT0}, s{sCol}, 7")
    a(f"v_add_u32 {V(vN)}, s{sT0}, {V(t[0])}")
    srd(a, rWO, sWO, WO_BYTES)
    a(f"s_mul_i32 s{sT0}, s{sWave}, 7")
    a(f"s_add_u32 s{sT0}, s{sT0}, 24")
    a(f"s_lshl_b32 s{sM}, s{sT0}, 10")
    a(f"s_mul_i32 s{sSo}, s{sT0}, {8*ROWB}")
    def wo_dma(n):
        for i in range(n):
            a(f"s_mov_b32 m0, s{sM}")
            a(f"s_add_u32 s{sM}, s{sM}, 1024")
            a(f"buffer_load_dwordx4 {V(vN)}, s[{rWO}:{rWO+3}], s{sSo} offen lds")
            if i < n - 1: a(f"s_add_u32 s{sSo}, s{sSo}, {8*ROWB}")
    if OPT.get("fine"): a.stamp(2)
    wo_dma(7)
    if OPT.get("fine"): a.stamp(3)
    a(f"s_lshr_b32 s{sPh}, s{sCol}, 1")
    a(f"s_mul_i32 s{sT0}, s{sWave}, 3")
    a(f"s_lshl_b32 s{sM}, s{sT0}, 10")
    a(f"s_mul_i32 s{sSo}, s{sT0}, {8*ROWB}")
    a(f"s_lshl_b32 s{sT0}, s{sQb}, 10")
    a(f"s_add_u32 s{sT0}, s{sT0}, {WS_CNT}")
    a(f"v_lshl_add_u32 {V(t[0])}, {V(vL)}, 7, s{sT0}")
    a(f"v_mov_b32 {V(t[1])}, 1")
    a("s_waitcnt vmcnt(7)")
    if OPT.get("fine"): a.stamp(4)
    a("s_barrier")
    if OPT.get("fine"): a.stamp(5)
    a(f"s_cmp_lg_u32 s{sWave}, 7")
    a("s_cbranch_scc1 L3_noadd")
    a("s_mov_b64 exec, 0xff")
    a(f"buffer_atomic_add {V(t[1])}, {V(t[0])}, s[{rW}:{rW+3}], 0 offen sc1")
    a("s_mov_b64 exec, -1")
    a("L3_noadd:")
    wo_dma(3)
    a(f"s_mov_b32 s{sAny}, 0")
    for k in range(8):
        a(f"s_sub_u32 s{sT0}, s{sSel+k}, s{sRow}")
        a(f"s_cmp_lt_u32 s{sT0}, s{sNr}")
        a(f"s_cselect_b32 s{sAny}, 1, s{sAny}")
    a(f"s_cmp_lt_u32 s{sWave}, 6")
    a("s_cbranch_scc1 L3_cons")
    a(f"s_cmp_eq_u32 s{sWave}, 6")
    a("s_cbranch_scc1 L3_w_done")
    a(f"s_and_b32 s{sT1}, s{sHead}, 7")
    a(f"s_lshl_b32 s{sT1}, s{sT1}, 7")
    a(f"s_lshl_b32 s{sT0}, s{sQb}, 10")
    a(f"s_add_u32 s{sT0}, s{sT0}, s{sT1}")
    a(f"s_add_u32 s{sT0}, s{sT0}, {WS_CNT}")
    a(f"s_add_u32 s{sT1}, s{sT1}, {WS_CNT+72*128}")
    a(f"v_mov_b32 {V(t[0])}, 0")
    a(f"s_mov_b32 s{sT2}, {SPIN}")
    a("s_mov_b64 exec, 1")
    a(f"s_cmp_eq_u32 s{sAny}, 0")
    a("s_cbranch_scc1 L3_poll")
    a("L3_pollu:")
    a(f"buffer_load_dword {V(t[2])}, {V(t[0])}, s[{rW}:{rW+3}], s{sT1} offen sc1")
    a(f"s_sub_u32 s{sT2}, s{sT2}, 1")
    a("s_cbranch_scc1 L3_w_done")
    a("s_waitcnt vmcnt(0)")
    a(f"v_cmp_gt_u32 vcc, 80, {V(t[2])}")
    a("s_cbranch_vccnz L3_pollu")
    a("L3_poll:")
    a(f"buffer_load_dword {V(t[2])}, {V(t[0])}, s[{rW}:{rW+3}], s{sT0} offen sc1")
    a(f"s_sub_u32 s{sT2}, s{sT2}, 1")
    a("s_cbranch_scc1 L3_w_done")
    a("s_waitcnt vmcnt(0)")
    a(f"v_cmp_gt_u32 vcc, 32, {V(t[2])}")
    a("s_cbranch_vccnz L3_poll")
    a("L3_w_done:")
    a("s_waitcnt vmcnt(0)")
    a("s_barrier")
    END()
    a("L3_notile:")
    a(f"s_lshl_b32 s{sT0}, s{sQb}, 10")
    a(f"s_add_u32 s{sT0}, s{sT0}, {WS_CNT}")
    a(f"v_lshl_add_u32 {V(t[0])}, {V(vL)}, 7, s{sT0}")
    a(f"v_mov_b32 {V(t[1])}, 1")
    a("s_waitcnt vmcnt(0)")
    a("s_barrier")
    a(f"s_cmp_lg_u32 s{sWave}, 7")
    a("s_cbranch_scc1 L3_nt_end")
    a("s_mov_b64 exec, 0xff")
    a(f"buffer_atomic_add {V(t[1])}, {V(t[0])}, s[{rW}:{rW+3}], 0 offen sc1")
    a("L3_nt_end:")
    END()
    a("L3_cons:")
    a(f"v_lshrrev_b32 {V(vHi)}, 5, {V(vL)}")
    srd(a, rO, sWS, O_BYTES, WS_O)
    srd(a, rOut, sOut, X_BYTES)
    a(f"s_mul_i32 s{sOb}, s{sTb}, {PB}")
    a(f"s_mul_i32 s{sT0}, s{sKh}, 20480")
    a(f"s_add_u32 s{sOb}, s{sOb}, s{sT0}")
    a(f"v_lshlrev_b32 {V(t[5])}, 4, {V(vL)}")
    a(f"v_bfe_u32 {V(t[0])}, {V(vL)}, 2, 2")
    a(f"v_lshl_add_u32 {V(t[1])}, {V(vHi)}, 3, {V(t[0])}")
    a(f"v_lshlrev_b32 {V(t[1])}, 7, {V(t[1])}")
    a(f"v_lshrrev_b32 {V(t[0])}, 1, {V(t[0])}")
    a(f"v_xor_b32 {V(t[0])}, s{sKh}, {V(t[0])}")
    a(f"v_lshl_add_u32 {V(t[1])}, {V(t[0])}, 6, {V(t[1])}")
    a(f"v_bfe_u32 {V(t[0])}, {V(vL)}, 4, 1")
    a(f"v_lshl_add_u32 {V(t[1])}, {V(t[0])}, 5, {V(t[1])}")
    a(f"v_and_b32 {V(t[0])}, 3, {V(vL)}")
    a(f"v_lshl_add_u32 {V(t[1])}, {V(t[0])}, 3, {V(t[1])}")
    a(f"s_mul_i32 s{sT0}, s{sKh}, 40960")
    a(f"v_add_u32 {V(vA[0])}, s{sT0}, {V(t[1])}")
    a(f"v_xor_b32 {V(vA[1])}, 64, {V(vA[0])}")
    def xslot(dst, w_expr):
        a(f"s_lshr_b32 s{sT0}, s{w_expr}, 1")
        a(f"s_add_u32 s{sT0}, s{sT0}, s{sPh}")
        a(f"s_cmp_ge_u32 s{sT0}, 5")
        a(f"s_cselect_b32 s{sT1}, 5, 0")
        a(f"s_sub_u32 s{sT0}, s{sT0}, s{sT1}")
        a(f"s_and_b32 s{sT1}, s{w_expr}, 1")
        a(f"s_lshl1_add_u32 s{sT0}, s{sT0}, s{sT1}")
        a(f"s_lshl_b32 s{sT0}, s{sT0}, 12")
        a(f"v_add_u32 {V(dst)}, s{sT0}, {V(t[5])}")
    xslot(t[0], sWave)
    a(f"s_mul_i32 s{sT2}, s{sKh}, -6")
    a(f"s_add_u32 s{sT2}, s{sT2}, 3")
    a(f"s_add_u32 s{sT2}, s{sT2}, s{sWave}")
    xslot(t[1], sT2)
    if OPT.get("fine"): a.stamp(6)
    a(f"v_mov_b32 {V(vXo)}, v124")
    a(f"v_mov_b32 {V(vTok)}, v125")
    for (p_, q_) in ((0, 2), (1, 3), (4, 6), (5, 7)):
        a(f"v_permlane32_swap_b32 {V(xl+p_)}, {V(xl+q_)}")
    for i in range(8):
        a(f"v_lshlrev_b32 {V(res+2*i)}, 16, {V(xl+i)}")
        a(f"v_and_b32 {V(res+2*i+1)}, 0xffff0000, {V(xl+i)}")
    for i in range(0, 16, 2):
        a(f"v_pk_add_f32 {V(xn+i,2)}, {V(res+i,2)}, {V(vSt,2)} op_sel_hi:[1,0] neg_lo:[0,1] neg_hi:[0,1]")
    for rnd in range(2):
        for i in range(8):
            a(f"v_cvt_pk_bf16_f32 {V(xr+i)}, {V(xn+2*i)}, {V(xn+2*i+1)}")
        for i in range(8):
            a(f"v_lshlrev_b32 {V(xn+2*i)}, 16, {V(xr+i)}")
            a(f"v_and_b32 {V(xn+2*i+1)}, 0xffff0000, {V(xr+i)}")
        if rnd == 0:
            for i in range(0, 16, 2):
                a(f"v_pk_mul_f32 {V(xn+i,2)}, {V(xn+i,2)}, {V(vSt,2)} op_sel:[0,1] op_sel_hi:[1,1]")
    a(f"s_cmp_eq_u32 s{sAny}, 0")
    a("s_cbranch_scc0 L3_updaddr")
    a("L3_updaddr_ret:")
    if OPT.get("fine"): a.stamp(8)
    a("s_waitcnt vmcnt(0)")
    a.stamp(12)
    a("s_barrier")
    a.stamp(13)
    sP2 = sT2
    def o_base():
        a(f"s_lshl_b32 s{sSo}, s{sP2}, 12")
        a(f"s_add_u32 s{sSo}, s{sSo}, s{sOb}")
        a(f"s_add_u32 s{sP2}, s{sP2}, 1")
        a(f"s_cmp_eq_u32 s{sP2}, 5")
        a(f"s_cselect_b32 s{sP2}, 0, s{sP2}")
    def o_one(p, s):
        if s == 0: o_base()
        a(f"buffer_load_dwordx4 {V(OFS[p%3]+4*s,4)}, {V(t[5])}, s[{rO}:{rO+3}], s{sSo} offen offset:{1024*s} sc1")
    def set_phase():
        a(f"s_lshl_b32 s{sT0}, s{sPh}, 13")
        a(f"v_add_u32 {V(vP[0])}, s{sT0}, {V(vA[0])}")
        a(f"v_add_u32 {V(vP[1])}, s{sT0}, {V(vA[1])}")
        a(f"s_add_u32 s{sPh}, s{sPh}, 1")
        a(f"s_cmp_eq_u32 s{sPh}, 5")
        a(f"s_cselect_b32 s{sPh}, 0, s{sPh}")
    def rd(st, ks, ti):
        for tt in range(2):
            a(f"ds_read_b64_tr_b16 {V(wf[st]+4*ti+2*tt,2)}, {V(vP[ti])} offset:{(ks%4)*2048+tt*512}")
    def M(st, ks, ti):
        p, s = ks // 4, ks % 4
        c = "0" if ks == 0 else V(acc[ti], 16)
        a(f"v_mfma_f32_32x32x16_bf16 {V(acc[ti],16)}, {V(wf[st]+4*ti,4)}, {V(OFS[p%3]+4*s,4)}, {c}")
    a(f"s_mov_b32 s{sP2}, s{sPh}")
    pos = {}; issued = 0
    for p in range(3):
        for s in range(4):
            o_one(p, s); issued += 1; pos[(p, s)] = issued
    a(f"s_cmp_eq_u32 s{sAny}, 0")
    a("s_cbranch_scc0 L3_upd")
    a("L3_noupd:")
    set_phase()
    rd(0, 0, 0); rd(0, 0, 1)
    for i in range(0, 16, 2):
        a(f"v_pk_add_f32 {V(res+i,2)}, {V(res+i,2)}, {V(xn+i,2)}")
    for ks in range(20):
        p, s = ks // 4, ks % 4
        st, nx = ks % 2, (ks + 1) % 2
        a(f"s_waitcnt vmcnt({issued - pos[(p, s)]}) lgkmcnt(2)")
        M(st, ks, 0)
        if ks == 0: a.stamp(14)
        if s == 3 and ks < 19: set_phase()
        if ks == 14: a("s_barrier")
        if ks < 19:
            rd(nx, ks + 1, 0)
            a("s_waitcnt lgkmcnt(2)")
        else:
            a("s_waitcnt lgkmcnt(0)")
        M(st, ks, 1)
        if ks < 19: rd(nx, ks + 1, 1)
        if p < 2:
            o_one(p + 3, s); issued += 1; pos[(p + 3, s)] = issued
    a.stamp(15)
    a("s_nop 10")
    for k in range(4):
        a(f"ds_write_b128 {V(t[0])}, {V(acc[1]+4*k,4)} offset:{1024*k}")
    for i in range(0, 16, 2):
        a(f"v_pk_add_f32 {V(res+i,2)}, {V(res+i,2)}, {V(acc[0]+i,2)}")
    a("s_waitcnt lgkmcnt(0)")
    a("s_barrier")
    for k in range(4):
        a(f"ds_read_b128 {V(of+4*k,4)}, {V(t[1])} offset:{1024*k}")
    for k in range(4):
        a(f"s_waitcnt lgkmcnt({3-k})")
        for i in range(4*k, 4*k+4, 2):
            a(f"v_pk_add_f32 {V(res+i,2)}, {V(res+i,2)}, {V(of+i,2)}")
        for i in range(2*k, 2*k+2):
            a(f"v_cvt_pk_bf16_f32 {V(xr+i)}, {V(res+2*i)}, {V(res+2*i+1)}")
    a("s_nop 0")
    for (p_, q_) in ((0, 2), (1, 3), (4, 6), (5, 7)):
        a(f"v_permlane32_swap_b32 {V(xr+p_)}, {V(xr+q_)}")
    a(f"buffer_store_dwordx4 {V(xr,4)}, {V(vXo)}, s[{rOut}:{rOut+3}], s{sXo} offen {OPT['ost']}")
    a(f"buffer_store_dwordx4 {V(xr+4,4)}, {V(vXo)}, s[{rOut}:{rOut+3}], s{sXo} offen offset:32 {OPT['ost']}")
    END()
    a("L3_updaddr:")
    a(f"v_mov_b32 {V(t[2])}, 0x7fff0000")
    for k in range(8):
        a(f"v_cmp_ne_u32 vcc, s{sSel+k}, {V(vTok)}")
        a(f"s_mov_b32 s{sT0}, {k*2560}")
        a(f"v_mov_b32 {V(t[4])}, s{sT0}")
        a(f"v_cndmask_b32 {V(t[2])}, {V(t[4])}, {V(t[2])}, vcc")
    a(f"v_lshl_add_u32 {V(t[2])}, {V(vHi)}, 4, {V(t[2])}")
    a("s_branch L3_updaddr_ret")
    a("L3_upd:")
    a(f"s_lshl_b32 s{sT0}, s{sXo}, 1")
    a(f"s_add_u32 s{sT0}, s{sT0}, {WS_UPD}")
    for q in range(4):
        a(f"buffer_load_dwordx4 {V(wf[0]+4*q,4)}, {V(t[2])}, s[{rW}:{rW+3}], s{sT0} offen offset:{32*q} sc1")
    a("s_waitcnt vmcnt(0)")
    for i in range(0, 16, 2):
        a(f"v_pk_add_f32 {V(xn+i,2)}, {V(xn+i,2)}, {V(wf[0]+i,2)}")
    for i in range(8):
        a(f"v_cvt_pk_bf16_f32 {V(xr+i)}, {V(xn+2*i)}, {V(xn+2*i+1)}")
    for i in range(8):
        a(f"v_lshlrev_b32 {V(xn+2*i)}, 16, {V(xr+i)}")
        a(f"v_and_b32 {V(xn+2*i+1)}, 0xffff0000, {V(xr+i)}")
    a("s_branch L3_noupd")

def gen_k2(a):
    name = "attn_kernel"
    ST = "sc1"
    kernel_header(a, name)
    sWS = 4
    rKV, rQ = 8, 12
    sWave, sHead, sQb, sT0, sT1, sT2 = 16, 17, 18, 19, 20, 21
    sTile, sM0, sM0b, sCnt, sDelta, sSlot, sOdd, sTb = 22, 23, 24, 25, 26, 27, 28, 29
    sHi = 30
    sSo, sTc, sP0, sM2 = 32, 33, 34, 35
    vL = 1
    a(f"s_cmp_ge_u32 s2, {256+NMOE}")
    a("s_cbranch_scc1 L2_end")
    a.stamp_init()
    END = lambda: a.end(1, rQ, sWave, WS_DBG)
    a(f"s_load_dwordx2 s[{sWS}:{sWS+1}], s[0:1], 80")
    a("v_lshrrev_b32 v2, 6, v0")
    a(f"v_and_b32 {V(vL)}, 63, v0")
    a(f"v_readfirstlane_b32 s{sWave}, v2")
    a("s_cmp_ge_u32 s2, 256")
    a("s_cbranch_scc1 L2_moe")
    if OPT["prio"]: a("s_setprio 1")
    sX, sWO, sOut, sSel = 36, 38, 40, 48
    a(f"s_load_dwordx2 s[{sX}:{sX+1}], s[0:1], 0")
    a(f"s_load_dwordx2 s[{sWO}:{sWO+1}], s[0:1], 16")
    a(f"s_load_dwordx2 s[{sOut}:{sOut+1}], s[0:1], 64")
    a(f"s_load_dwordx4 s[60:63], s[0:1], 40")
    a(f"s_load_dwordx2 s[64:65], s[0:1], 56")
    R = Regs(2, 128)
    t = [R.alloc() for _ in range(4)]
    vDma = [R.alloc() for _ in range(3)]
    vKa, vKb, vV, vIdx = [R.alloc() for _ in range(4)]
    Kb = R.alloc(2, 2)
    Qa = [R.alloc(4, 4) for _ in range(2)]
    Qb = [R.alloc(2, 2) for _ in range(2)]
    Ka = R.alloc(4, 4)
    Va = [R.alloc(4, 4) for _ in range(2)]
    Vb = [R.alloc(4, 4) for _ in range(2)]
    O = [R.alloc(16, 4) for _ in range(2)]
    Sx = [R.alloc(16, 4) for _ in range(2)]
    a(f"s_lshr_b32 s{sHead}, s2, 3")
    a(f"s_and_b32 s{sQb}, s2, 7")
    a(f"s_and_b32 s{sOdd}, s{sHead}, 1")
    a(f"s_mul_i32 s{sP0}, s{sHead}, 5")
    a(f"s_lshr_b32 s{sP0}, s{sP0}, 1")
    a(f"s_lshl_b32 s{sP0}, s{sP0}, 9")
    a(f"s_and_b32 s{sT0}, s{sWave}, 3")
    a(f"s_lshl_b32 s{sT0}, s{sT0}, 1")
    a(f"s_lshr_b32 s{sT2}, s{sWave}, 2")
    a(f"s_add_u32 s{sT0}, s{sT0}, s{sT2}")
    a(f"s_lshl_b32 s{sTb}, s{sQb}, 3")
    a(f"s_add_u32 s{sTb}, s{sTb}, s{sT0}")
    a(f"s_mul_i32 s{sT0}, s{sTb}, {PB}")
    a(f"s_add_u32 s{sT0}, s{sT0}, s{sP0}")
    a(f"s_add_u32 s{sSo}, s{sT0}, {WS_Q}")
    a(f"s_mul_i32 s{sT1}, s{sT2}, {(-2*PB) & 0xffffffff}")
    a(f"s_add_u32 s{sT1}, s{sT1}, {PB}")
    a(f"s_add_u32 s{sT1}, s{sT1}, s{sSo}")
    a(f"s_lshl_b32 s{sT0}, s{sOdd}, 9")
    a(f"v_lshl_add_u32 {V(vKa)}, {V(vL)}, 4, s{sT0}")
    a(f"s_mul_i32 s{sT0}, s{sOdd}, {(8-1024) & 0xffffffff}")
    a(f"s_add_u32 s{sT0}, s{sT0}, 1024")
    a(f"v_and_b32 {V(t[1])}, 31, {V(vL)}")
    a(f"v_lshl_add_u32 {V(vKb)}, {V(t[1])}, 4, s{sT0}")
    sN = [sM0b, sM2, 42]
    a(f"s_min_u32 s{sN[0]}, s{sWave}, 6")
    a(f"s_cmp_ge_u32 s{sWave}, 3")
    a(f"s_cselect_b32 s{sT0}, 8, 0")
    a(f"s_add_u32 s{sN[0]}, s{sN[0]}, s{sT0}")
    a(f"s_lshl_b32 s{sN[0]}, s{sN[0]}, 10")
    a(f"s_cmp_ge_u32 s{sWave}, 4")
    a(f"s_cselect_b32 s{sT0}, 7, 3")
    a(f"s_lshl1_add_u32 s{sN[1]}, s{sWave}, s{sT0}")
    a(f"s_lshl_b32 s{sN[1]}, s{sN[1]}, 10")
    a(f"s_mul_i32 s{sT0}, s{sHead}, {VH}")
    a(f"s_add_u32 s{sT0}, s{sT0}, {PB-1536}")
    a(f"s_mov_b32 s{sTc}, {KVB-BLK}")
    a("s_waitcnt lgkmcnt(0)")
    srd(a, rQ, sWS, WS_END)
    a(f"buffer_load_dwordx4 {V(Qa[0],4)}, {V(vKa)}, s[{rQ}:{rQ+3}], s{sSo} offen")
    a(f"buffer_load_dwordx2 {V(Qb[0],2)}, {V(vKb)}, s[{rQ}:{rQ+3}], s{sSo} offen")
    a(f"buffer_load_dwordx4 {V(Qa[1],4)}, {V(vKa)}, s[{rQ}:{rQ+3}], s{sT1} offen")
    a(f"buffer_load_dwordx2 {V(Qb[1],2)}, {V(vKb)}, s[{rQ}:{rQ+3}], s{sT1} offen")
    srd(a, rKV, sWS, KV_BYTES, WS_KV)
    a(f"s_add_u32 s56, s{sWS}, {WS_SEL}")
    a(f"s_addc_u32 s57, s{sWS+1}, 0")
    a(f"s_load_dwordx8 s[{sSel}:{sSel+7}], s[56:57], 0")
    a(f"s_mul_i32 s{sSo}, s{sQb}, {8*KVB}")
    for i in range(3):
        if i < 2: a(f"s_mov_b32 m0, s{sN[i]}")
        a(f"v_lshl_add_u32 {V(t[0])}, {V(vL)}, 4, s{sN[min(i,1)]}")
        if i == 2: a(f"v_add_u32 {V(t[0])}, 1024, {V(t[0])}")
        a(f"v_lshrrev_b32 {V(t[2])}, 4, {V(t[0])}")
        a(f"v_mul_u32_u24 {V(t[2])}, 1425, {V(t[2])}")
        a(f"v_lshrrev_b32 {V(t[2])}, 18, {V(t[2])}")
        a(f"v_mul_u32_u24 {V(t[3])}, {BLK}, {V(t[2])}")
        a(f"v_sub_u32 {V(t[3])}, {V(t[0])}, {V(t[3])}")
        a(f"v_cmp_gt_u32 vcc, 1536, {V(t[3])}")
        a(f"v_mad_u32_u24 {V(t[0])}, {V(t[2])}, s{sTc}, {V(t[0])}")
        a(f"v_mov_b32 {V(t[2])}, s{sT0}")
        a(f"v_mov_b32 {V(t[3])}, s{sP0}")
        a(f"v_cndmask_b32 {V(t[2])}, {V(t[2])}, {V(t[3])}, vcc")
        a(f"v_add_u32 {V(vDma[i])}, {V(t[0])}, {V(t[2])}")
        if i == 2: a(f"v_subrev_u32 {V(vDma[i])}, 1024, {V(vDma[i])}")
        a(f"buffer_load_dwordx4 {V(vDma[i])}, s[{rKV}:{rKV+3}], s{sSo} offen offset:{1024*(i//2)} lds")

    def dma():
        a(f"s_mul_i32 s{sSo}, s{sTile}, {8*KVB}")
        a(f"s_add_u32 m0, s{sM0}, s{sN[0]}")
        a(f"s_add_u32 s{sTile}, s{sTile}, 1")
        a(f"buffer_load_dwordx4 {V(vDma[0])}, s[{rKV}:{rKV+3}], s{sSo} offen lds")
        a(f"s_add_u32 m0, s{sM0}, s{sN[1]}")
        a(f"s_and_b32 s{sTile}, s{sTile}, 7")
        for i in (1, 2):
            a(f"buffer_load_dwordx4 {V(vDma[i])}, s[{rKV}:{rKV+3}], s{sSo} offen offset:{1024*(i//2)} lds")
    a(f"s_add_u32 s{sTile}, s{sQb}, 1")
    a(f"s_and_b32 s{sTile}, s{sTile}, 7")
    a(f"s_mov_b32 s{sM0}, {TILE}")
    a(f"s_mov_b32 s{sTc}, {TILE}")
    a(f"s_mul_i32 s{sT2}, s{sT2}, {4*BLK}")
    a(f"s_mov_b32 s{sHi}, 0")
    a(f"s_mov_b32 s{sHi+1}, -1")
    a(f"s_lshl_b32 s{sT0}, s{sOdd}, 2")
    a(f"v_add_u32 {V(t[2])}, s{sT0}, {V(t[1])}")
    a(f"v_subrev_u32 {V(t[3])}, 20, {V(t[2])}")
    a(f"v_min_u32 {V(t[2])}, {V(t[2])}, {V(t[3])}")
    a(f"v_cmp_gt_u32 vcc, 20, {V(t[1])}")
    a(f"v_min_u32 {V(t[1])}, 21, {V(t[1])}")
    a(f"v_lshrrev_b32 {V(t[3])}, 5, {V(vL)}")
    a(f"v_cndmask_b32 {V(t[1])}, {V(t[1])}, {V(t[2])}, vcc")
    a(f"v_mul_u32_u24 {V(t[3])}, {VG}, {V(t[3])}")
    a(f"v_lshl_add_u32 {V(vV)}, {V(t[1])}, 4, {V(t[3])}")
    a(f"v_add_u32 {V(vV)}, 1536, {V(vV)}")
    a(f"v_mov_b32 {V(t[2])}, {1536+320}")
    a(f"v_cndmask_b32 {V(vKb)}, {V(vKb)}, {V(t[2])}, s[{sHi}:{sHi+1}]")
    a(f"v_mov_b32 {V(vIdx)}, 0xdddddddd")
    a("v_mov_b32 v124, 0")
    for r in range(16): a(f"v_mov_b32 {V(O[0]+r)}, 0")
    for r in range(8, 16): a(f"v_mov_b32 {V(Sx[1]+r)}, 0")
    for r in range(4): a(f"v_mov_b32 {V(Vb[1]+r)}, 0")

    def ex(r): a(f"v_exp_f32 {V(r)}, {V(r)}")
    def qk1(x): a(f"v_mfma_f32_32x32x16_bf16 {V(Sx[x],16)}, {V(Ka,4)}, {V(Qa[x],4)}, 0")
    def qk2(x): a(f"v_mfma_f32_32x32x8_bf16 {V(Sx[x],16)}, {V(Kb,2)}, {V(Qb[x],2)}, {V(Sx[x],16)}")
    def pv(x, vf, half): a(f"v_smfmac_f32_32x32x32_bf16 {V(O[x],16)}, {V(vf,4)}, {V(Sx[x]+8*half,8)}, {V(vIdx)}")
    def rdK(off):
        a(f"ds_read_b128 {V(Ka,4)}, {V(vKa)} offset:{off}")
        a(f"ds_read_b64 {V(Kb,2)}, {V(vKb)} offset:{off}")
    def rdV(buf, off):
        a(f"ds_read_b128 {V(Va[buf],4)}, {V(vV)} offset:{off}")
        a(f"ds_read_b128 {V(Vb[buf],4)}, {V(vV)} offset:{off+2*VG}")
    def rowmax(s, dst, first):
        if first:
            a(f"v_max3_f32 {V(dst)}, {V(s)}, {V(s+1)}, {V(s+2)}")
            rest = list(range(3, 16))
        else:
            rest = list(range(16))
        while len(rest) >= 2:
            a(f"v_max3_f32 {V(dst)}, {V(dst)}, {V(s+rest[0])}, {V(s+rest[1])}")
            rest = rest[2:]
        if rest: a(f"v_max_f32 {V(dst)}, {V(dst)}, {V(s+rest[0])}")
    def set_negmax(x, m):
        u, w = t[2], t[3]
        a(f"v_mov_b32 {V(u)}, {V(m)}")
        a("s_nop 1")
        a(f"v_permlane32_swap_b32 {V(u)}, {V(m)}")
        a("s_nop 1")
        a(f"v_max_f32 {V(m)}, {V(u)}, {V(m)}")
        a(f"v_cvt_pk_bf16_f32 {V(u)}, -{V(m)}, -{V(m)}")
        a(f"v_and_b32 {V(u)}, 0xffff0000, {V(u)}")
        a(f"v_sub_f32 {V(m)}, -{V(m)}, {V(u)}")
        bf16_round(a, w, m)
        a(f"v_sub_f32 {V(m)}, {V(m)}, {V(w)}")
        a(f"v_cvt_pk_bf16_f32 {V(u)}, {V(u)}, {V(w)}")
        a(f"v_cvt_pk_bf16_f32 {V(w)}, {V(m)}, 0")
        a(f"v_cndmask_b32 {V(Qb[x])}, {V(Qb[x])}, {V(u)}, s[{sHi}:{sHi+1}]")
        a(f"v_cndmask_b32 {V(Qb[x]+1)}, {V(Qb[x]+1)}, {V(w)}, s[{sHi}:{sHi+1}]")

    a.stamp(2)
    a("s_waitcnt vmcnt(3) lgkmcnt(0)")
    for x in range(2):
        for r in range(2):
            a(f"v_cndmask_b32 {V(Qb[x]+r)}, {V(Qb[x]+r)}, 0, s[{sHi}:{sHi+1}]")
    a("s_waitcnt vmcnt(2)")
    a("s_barrier")
    a.stamp(3)
    rdK(0)
    a(f"v_add_u32 {V(vV)}, s{sT2}, {V(vV)}")
    a("s_waitcnt lgkmcnt(0)")
    qk1(0); qk2(0)
    a(f"v_mfma_f32_32x32x16_bf16 {V(O[1],16)}, {V(Ka,4)}, {V(Qa[1],4)}, 0")
    a(f"v_mfma_f32_32x32x8_bf16 {V(O[1],16)}, {V(Kb,2)}, {V(Qb[1],2)}, {V(O[1],16)}")
    a(f"v_add_u32 {V(vKa)}, s{sT2}, {V(vKa)}")
    a(f"v_add_u32 {V(vKb)}, s{sT2}, {V(vKb)}")
    rdK(0)
    rdV(0, 0)
    rowmax(Sx[0], t[0], True)
    set_negmax(0, t[0])
    a("s_waitcnt lgkmcnt(2)")
    qk1(0); qk2(0)
    rowmax(O[1], t[0], True)
    set_negmax(1, t[0])
    for r in range(16): a(f"v_mov_b32 {V(O[1]+r)}, 0")
    a(f"s_mov_b32 s{sCnt}, 8")
    a(f"s_mov_b32 s{sSlot}, 0")
    a("s_waitcnt vmcnt(0) lgkmcnt(0)")
    a("s_barrier")
    dma()
    a(f"s_mov_b32 s{sM0}, {2*TILE}")
    a.stamp(4)
    a.stamp_cyc(8)
    a(".p2align 6")
    a("L2_loop:")
    for n in range(4):
        cur, nxt = n % 2, (n + 1) % 2
        off = (n + 1) * BLK if n < 3 else 0
        Sa, Sb = Sx
        ex(Sa); ex(Sa + 1)
        pv(1, Vb[nxt], 1)
        if n == 3:
            a(f"s_add_u32 s{sSlot}, s{sSlot}, 1")
            a(f"s_cmp_eq_u32 s{sSlot}, 3")
            a(f"s_cselect_b32 s{sDelta}, {(-2*TILE) & 0xffffffff}, s{sTc}")
            a(f"s_cselect_b32 s{sSlot}, 0, s{sSlot}")
            a(f"v_add_u32 {V(vV)}, s{sDelta}, {V(vV)}")
            a(f"v_add_u32 {V(vKa)}, s{sDelta}, {V(vKa)}")
            a(f"v_add_u32 {V(vKb)}, s{sDelta}, {V(vKb)}")
            a(f"s_sub_u32 s{sCnt}, s{sCnt}, 1")
            a(f"s_cmp_lt_u32 s{sCnt}, 2")
            a("s_waitcnt vmcnt(0)")
            a("s_barrier")
            a("s_cbranch_scc1 L2_nodma")
            dma()
            a(f"s_add_u32 s{sM0}, s{sM0}, {TILE}")
            a(f"s_sub_u32 s{sT0}, s{sM0}, {3*TILE}")
            a(f"s_cmp_ge_u32 s{sM0}, {3*TILE}")
            a(f"s_cselect_b32 s{sM0}, s{sT0}, s{sM0}")
            if OPT["touch"]:
                a(f"s_cmp_ge_u32 s{sCnt}, 6")
                a("s_cbranch_scc1 L2_touch")
            a("L2_nodma_ret:")
        rdV(nxt, off)
        for i in range(2, 6): ex(Sa + i)
        qk1(1)
        for i in range(6, 10): ex(Sa + i)
        qk2(1)
        rdK(off)
        for i in range(10, 14): ex(Sa + i)
        pv(0, Va[cur], 0)
        for i in range(14, 16): ex(Sa + i)
        ex(Sb); ex(Sb + 1)
        pv(0, Vb[cur], 1)
        for i in range(2, 6): ex(Sb + i)
        a("s_waitcnt lgkmcnt(0)")
        qk1(0)
        for i in range(6, 10): ex(Sb + i)
        qk2(0)
        for i in range(10, 14): ex(Sb + i)
        pv(1, Va[cur], 0)
        for i in range(14, 16): ex(Sb + i)
    a(f"s_cmp_lg_u32 s{sCnt}, 0")
    a("s_cbranch_scc1 L2_loop")
    a.stamp(5)
    a.stamp_cyc(9)
    a(f"s_mul_i32 s{sT0}, s{sWave}, 3072")
    a(f"s_xor_b32 s{sT1}, s{sWave}, 4")
    pv(1, Vb[1], 1)
    a(f"s_mul_i32 s{sT1}, s{sT1}, 3072")
    a(f"v_lshl_add_u32 {V(t[0])}, {V(vL)}, 4, s{sT0}")
    a(f"v_lshl_add_u32 {V(t[1])}, {V(vL)}, 4, s{sT1}")
    a(f"s_mul_i32 s{sSo}, s{sTb}, {PB}")
    a(f"s_add_u32 s{sSo}, s{sSo}, s{sP0}")
    a(f"s_add_u32 s{sSo}, s{sSo}, {WS_O}")
    a(f"s_lshl_b32 s{sT0}, s{sOdd}, 9")
    a(f"v_lshl_add_u32 {V(vKa)}, {V(vL)}, 4, s{sT0}")
    a(f"s_mul_i32 s{sT0}, s{sOdd}, {(8-1024) & 0xffffffff}")
    a(f"s_add_u32 s{sT0}, s{sT0}, 1024")
    a(f"v_lshl_add_u32 {V(vDma[0])}, {V(vL)}, 4, s{sT0}")
    a("s_nop 2")
    for k in range(3):
        a(f"ds_write_b128 {V(t[0])}, {V(O[1]+4*k,4)} offset:{1024*k}")
    a("s_waitcnt lgkmcnt(0)")
    a("s_barrier")
    a.stamp(6)
    for k in range(3):
        a(f"ds_read_b128 {V(Sx[0]+4*k,4)}, {V(t[1])} offset:{1024*k}")
    o = O[0]
    a(f"s_mov_b32 s{sT0}, {hex(f32bits(2.0**-27))}")
    a(f"s_mov_b32 s{sT1}, {hex(f32bits(2.0**73))}")
    for k in range(3):
        a(f"s_waitcnt lgkmcnt({2-k})")
        for r in range(4*k, 4*k+4):
            a(f"v_add_f32 {V(o+r)}, {V(o+r)}, {V(Sx[0]+r)}")
    a(f"v_mul_f32 {V(t[0])}, |{V(o)}|, s{sT0}")
    for r in range(1, 12):
        a(f"v_fma_f32 {V(t[0])}, |{V(o+r)}|, s{sT0}, {V(t[0])}")
    a(f"v_cmp_nle_f32 vcc, {V(t[0])}, s{sT1}")
    a("s_cbranch_vccnz L2_fallback")
    a("L2_final:")
    a(f"v_mov_b32 {V(t[0])}, {V(o+8)}")
    a(f"v_mov_b32 {V(t[1])}, {V(o+8)}")
    a("s_nop 1")
    a(f"v_permlane32_swap_b32 {V(t[0])}, {V(t[1])}")
    a("s_nop 1")
    a(f"v_rcp_f32 {V(t[1])}, {V(t[1])}")
    a("s_nop 0")
    for r in range(12):
        a(f"v_mul_f32 {V(o+r)}, {V(t[1])}, {V(o+r)}")
    for r in range(6):
        a(f"v_cvt_pk_bf16_f32 {V(o+r)}, {V(o+2*r)}, {V(o+2*r+1)}")
    a(f"v_permlane32_swap_b32 {V(o)}, {V(o+2)}")
    a(f"v_permlane32_swap_b32 {V(o+1)}, {V(o+3)}")
    a(f"buffer_store_dwordx4 {V(o,4)}, {V(vKa)}, s[{rQ}:{rQ+3}], s{sSo} offen {ST}")
    a("s_mov_b32 exec_hi, 0")
    a(f"buffer_store_dwordx2 {V(o+4,2)}, {V(vDma[0])}, s[{rQ}:{rQ+3}], s{sSo} offen {ST}")
    a("s_mov_b64 exec, -1")
    a.stamp(7)
    gen_p3(a, END, sWS, sX, sWO, sOut, sSel, sWave, sHead, sQb, rQ, vL)

    a("L2_nodma:")
    a(f"s_cmp_eq_u32 s{sCnt}, 0")
    a("s_cbranch_scc1 L2_nodma_ret")
    sRow, sCol, sNr, sKh, sTb3, sXo = P3S
    a(f"s_mul_i32 s{sT1}, s{sHead}, 26")
    a(f"s_lshr_b32 s{sT1}, s{sT1}, 8")
    a(f"s_mul_i32 s{sT0}, s{sT1}, 10")
    a(f"s_sub_u32 s{sCol}, s{sHead}, s{sT0}")
    a(f"s_lshl_b32 s{sRow}, s{sQb}, 8")
    a(f"s_mul_i32 s{sT0}, s{sT1}, 96")
    a(f"s_add_u32 s{sRow}, s{sRow}, s{sT0}")
    a(f"s_cmp_eq_u32 s{sT1}, 2")
    a(f"s_cselect_b32 s{sNr}, 64, 96")
    a(f"s_cmp_ge_u32 s{sWave}, 3")
    a(f"s_cselect_b32 s{sKh}, 1, 0")
    a(f"s_mul_i32 s{sT0}, s{sKh}, 3")
    a(f"s_sub_u32 s{sT0}, s{sWave}, s{sT0}")
    a(f"s_lshr_b32 s{sTb3}, s{sRow}, 5")
    a(f"s_add_u32 s{sTb3}, s{sTb3}, s{sT0}")
    a(f"s_lshl_b32 s{sT0}, s{sT0}, 5")
    a(f"s_cmp_lt_u32 s{sT0}, s{sNr}")
    a(f"s_cselect_b32 s{sTb3}, s{sTb3}, 64")
    a(f"s_lshl_b32 s{sXo}, s{sCol}, 7")
    a(f"s_lshl_b32 s{sT1}, s{sKh}, 6")
    a(f"s_add_u32 s{sXo}, s{sXo}, s{sT1}")
    srd(a, 56, sX, X_BYTES)
    a(f"v_and_b32 v125, 31, {V(vL)}")
    a(f"s_lshl_b32 s{sT0}, s{sTb3}, 5")
    a(f"v_add_u32 v125, s{sT0}, v125")
    a(f"v_mul_u32_u24 v124, {ROWB}, v125")
    a(f"v_lshrrev_b32 {V(t[0])}, 5, {V(vL)}")
    a(f"v_lshl_add_u32 v124, {V(t[0])}, 4, v124")
    a(f"v_lshlrev_b32 {V(t[0])}, 4, v125")
    a(f"s_mov_b32 s{sT0}, {WS_STAT}")
    a(f"buffer_load_dwordx4 v[112:115], v124, s[56:59], s{sXo} offen")
    a(f"buffer_load_dwordx4 v[116:119], v124, s[56:59], s{sXo} offen offset:32")
    a(f"buffer_load_dwordx2 v[122:123], {V(t[0])}, s[{rQ}:{rQ+3}], s{sT0} offen")
    a(f"s_lshl3_add_u32 s{sT0}, s{sHead}, s{sWave}")
    a(f"s_mul_i32 s{sT0}, s{sT0}, {25*128}")
    a(f"v_min_u32 {V(t[0])}, 24, {V(vL)}")
    a(f"v_lshl_add_u32 {V(t[0])}, {V(t[0])}, 7, s{sT0}")
    a(f"global_load_dword {V(t[1])}, {V(t[0])}, s[{sWO}:{sWO+1}]")
    a(f"s_cmp_lg_u32 s{sWave}, 0")
    a("s_cbranch_scc1 L2_nodma_ret")
    a(f"v_mov_b32 {V(t[0])}, {V(vL)}")
    code_prefetch(a, "L2_final", "((L2_nodma-L2_final+127)/128)", 60, t[0], t[1], "p3", back=True)
    a("s_branch L2_nodma_ret")

    a("L2_touch:")
    a(f"s_cmp_eq_u32 s{sCnt}, 6")
    a("s_cbranch_scc1 L2_touched")
    a(f"s_lshr_b32 s{sT0}, s{sWave}, 1")
    a(f"s_lshl3_add_u32 s{sT0}, s{sT0}, s{sQb}")
    a(f"s_cmp_ge_u32 s{sT0}, 27")
    a("s_cbranch_scc1 L2_nodma_ret")
    a(f"s_mul_i32 s{sT1}, s{sHead}, 20")
    a(f"v_min_u32 {V(t[0])}, 19, {V(vL)}")
    a(f"v_add_u32 {V(t[0])}, s{sT1}, {V(t[0])}")
    a(f"v_mul_u32_u24 {V(t[1])}, {WG_ROWB}, {V(t[0])}")
    a(f"s_lshl_b32 s{sT1}, s{sT0}, 7")
    a(f"v_add_u32 {V(t[1])}, s{sT1}, {V(t[1])}")
    a(f"s_bitcmp1_b32 s{sWave}, 0")
    a("s_mov_b64 exec, 0xfffff")
    a("s_cbranch_scc1 L2_touch_u")
    a(f"global_load_dword {V(t[2])}, {V(t[1])}, s[60:61]")
    a(f"s_mul_i32 s{sT1}, s{sT0}, {64*ROWB}")
    a(f"v_lshl_add_u32 {V(t[0])}, {V(t[0])}, 7, s{sT1}")
    a(f"global_load_dword {V(t[3])}, {V(t[0])}, s[64:65]")
    a("s_mov_b64 exec, -1")
    a("s_branch L2_nodma_ret")
    a("L2_touch_u:")
    a(f"global_load_dword {V(t[2])}, {V(t[1])}, s[62:63]")
    a("s_mov_b64 exec, -1")
    a("s_branch L2_nodma_ret")
    a("L2_touched:")
    a(f"s_cmp_lg_u32 s{sWave}, 0")
    a("s_cbranch_scc1 L2_nodma_ret")
    a(f"s_lshl_b32 s{sT0}, s{sQb}, 7")
    a(f"s_add_u32 s{sT0}, s{sT0}, {WS_CNT+80*128}")
    a(f"v_mov_b32 {V(t[0])}, s{sT0}")
    a(f"v_mov_b32 {V(t[1])}, 1")
    a("s_mov_b64 exec, 1")
    a(f"buffer_atomic_add {V(t[1])}, {V(t[0])}, s[{rQ}:{rQ+3}], 0 offen sc1")
    a("s_mov_b64 exec, -1")
    a("s_branch L2_nodma_ret")

    a("L2_fallback:")
    fK, fKb, fV = vDma[1], vDma[2], vV
    a(f"v_add_u32 {V(fK)}, s{sP0}, {V(vKa)}")
    a(f"v_and_b32 {V(t[1])}, 31, {V(vL)}")
    a(f"s_mul_i32 s{sT0}, s{sOdd}, {(8-1024) & 0xffffffff}")
    a(f"s_add_u32 s{sT0}, s{sT0}, 1024")
    a(f"s_add_u32 s{sT0}, s{sT0}, s{sP0}")
    a(f"v_lshl_add_u32 {V(fKb)}, {V(t[1])}, 4, s{sT0}")
    a(f"s_mul_i32 s{sT1}, s{sHead}, {VH}")
    a(f"s_add_u32 s{sT1}, s{sT1}, {PB}")
    a(f"s_add_u32 s{sT0}, s{sT1}, 320")
    a(f"v_mov_b32 {V(t[2])}, s{sT0}")
    a(f"v_cndmask_b32 {V(fKb)}, {V(fKb)}, {V(t[2])}, s[{sHi}:{sHi+1}]")
    a(f"s_lshl_b32 s{sT0}, s{sOdd}, 2")
    a(f"v_add_u32 {V(t[2])}, s{sT0}, {V(t[1])}")
    a(f"v_subrev_u32 {V(t[3])}, 20, {V(t[2])}")
    a(f"v_min_u32 {V(t[2])}, {V(t[2])}, {V(t[3])}")
    a(f"v_cmp_gt_u32 vcc, 20, {V(t[1])}")
    a(f"v_min_u32 {V(t[1])}, 21, {V(t[1])}")
    a(f"v_lshrrev_b32 {V(t[3])}, 5, {V(vL)}")
    a(f"v_cndmask_b32 {V(t[1])}, {V(t[1])}, {V(t[2])}, vcc")
    a(f"v_mul_u32_u24 {V(t[3])}, {VG}, {V(t[3])}")
    a(f"v_lshl_add_u32 {V(fV)}, {V(t[1])}, 4, {V(t[3])}")
    a(f"v_add_u32 {V(fV)}, s{sT1}, {V(fV)}")
    for r in range(2):
        a(f"v_cndmask_b32 {V(Qb[0]+r)}, {V(Qb[0]+r)}, 0, s[{sHi}:{sHi+1}]")
    a(f"v_mov_b32 {V(t[0])}, 0xff800000")
    a(f"s_mov_b32 s{sT0}, 0")
    a("L2_fb_max:")
    a(f"buffer_load_dwordx4 {V(Ka,4)}, {V(fK)}, s[{rKV}:{rKV+3}], s{sT0} offen")
    a(f"buffer_load_dwordx2 {V(Kb,2)}, {V(fKb)}, s[{rKV}:{rKV+3}], s{sT0} offen")
    a("s_waitcnt vmcnt(0)")
    qk1(0); qk2(0)
    a("s_nop 15")
    rowmax(Sx[0], t[0], False)
    a(f"s_add_u32 s{sT0}, s{sT0}, {KVB}")
    a(f"s_cmp_lt_u32 s{sT0}, {64*KVB}")
    a("s_cbranch_scc1 L2_fb_max")
    set_negmax(0, t[0])
    for r in range(16): a(f"v_mov_b32 {V(O[0]+r)}, 0")
    a(f"s_mov_b32 s{sT0}, 0")
    a("L2_fb_pv:")
    a(f"buffer_load_dwordx4 {V(Ka,4)}, {V(fK)}, s[{rKV}:{rKV+3}], s{sT0} offen")
    a(f"buffer_load_dwordx2 {V(Kb,2)}, {V(fKb)}, s[{rKV}:{rKV+3}], s{sT0} offen")
    a(f"buffer_load_dwordx4 {V(Va[0],4)}, {V(fV)}, s[{rKV}:{rKV+3}], s{sT0} offen")
    a(f"buffer_load_dwordx4 {V(Vb[0],4)}, {V(fV)}, s[{rKV}:{rKV+3}], s{sT0} offen offset:{2*VG}")
    a("s_waitcnt vmcnt(0)")
    qk1(0); qk2(0)
    a("s_nop 15")
    for i in range(16): ex(Sx[0] + i)
    a("s_nop 1")
    pv(0, Va[0], 0); pv(0, Vb[0], 1)
    a(f"s_add_u32 s{sT0}, s{sT0}, {KVB}")
    a(f"s_cmp_lt_u32 s{sT0}, {64*KVB}")
    a("s_cbranch_scc1 L2_fb_pv")
    a("s_nop 15")
    a("s_branch L2_final")

    a("L2_moe:")
    if OPT["mprio"]: a(f"s_setprio {OPT['mprio']}")
    a(f"s_cmp_ge_u32 s{sWave}, 4")
    a("s_cbranch_scc1 L2_end")
    sX, sG, sU, sD = 6, 36, 38, 40
    rX, rG, rU, rD = 8, 44, 48, 52
    rW = 12
    sWi = 17
    sK = 56
    a(f"s_load_dwordx2 s[{sX}:{sX+1}], s[0:1], 0")
    a(f"s_load_dwordx4 s[{sG}:{sG+3}], s[0:1], 40")
    a(f"s_load_dwordx2 s[{sD}:{sD+1}], s[0:1], 56")
    M = Regs(2, 128)
    u = [M.alloc() for _ in range(8)]
    vSt = M.alloc(4, 4); vR = vSt + 2
    xb = M.alloc(20, 4)
    wf = M.alloc(40, 4)
    G = M.alloc(4, 4); U = M.alloc(4, 4)
    hb = M.alloc(2, 2)
    a(f"s_sub_u32 s{sT0}, s2, 256")
    a(f"s_lshr_b32 s{sT1}, s{sT0}, 5")
    a(f"s_and_b32 s{sT2}, s{sT0}, 7")
    a(f"s_lshl3_add_u32 s{sT1}, s{sT1}, s{sT2}")
    a(f"s_cmp_ge_u32 s{sT1}, 27")
    a("s_cbranch_scc1 L2_end")
    a(f"s_bfe_u32 s{sT0}, s{sT0}, 0x20003")
    a(f"s_lshl2_add_u32 s{sWi}, s{sT1}, s{sT0}")
    a("s_waitcnt lgkmcnt(0)")
    srd(a, rW, sWS, WS_END)
    srd(a, rX, sX, X_BYTES)
    srd(a, rG, sG, WG_BYTES)
    srd(a, rU, sU, WG_BYTES)
    srd(a, rD, sD, WD_BYTES)
    a(f"s_mov_b32 s{sT0}, {WS_SEL}")
    a(f"v_and_b32 {V(u[4])}, 15, {V(vL)}")
    a(f"v_and_b32 {V(u[0])}, 7, {V(vL)}")
    a(f"v_lshlrev_b32 {V(u[0])}, 2, {V(u[0])}")
    a(f"buffer_load_dword {V(u[3])}, {V(u[0])}, s[{rW}:{rW+3}], s{sT0} offen")
    a.stamp(2)
    a(f"v_lshrrev_b32 {V(u[6])}, 4, {V(vL)}")
    a(f"s_mul_i32 s{sT0}, s{sWave}, 320")
    a(f"s_mov_b32 s{sT1}, {WS_STAT}")
    a("s_waitcnt vmcnt(0)")
    a.stamp(3)
    a(f"v_mul_u32_u24 {V(u[5])}, {ROWB}, {V(u[3])}")
    a(f"v_lshl_add_u32 {V(u[5])}, {V(u[6])}, 4, {V(u[5])}")
    a(f"v_mov_b32 {V(u[7])}, {WS_KV+PB+320}")
    a("s_mov_b32 exec_lo, 0x00ff00ff")
    a("s_mov_b32 exec_hi, 0x00ff00ff")
    for s in range(5):
        a(f"buffer_load_dwordx4 {V(xb+4*s,4)}, {V(u[5])}, s[{rX}:{rX+3}], s{sT0} offen offset:{64*s}")
    a("s_not_b64 exec, exec")
    for s in range(5):
        a(f"buffer_load_dwordx4 {V(xb+4*s,4)}, {V(u[7])}, s[{rW}:{rW+3}], 0 offen")
    a("s_mov_b64 exec, -1")
    a(f"v_lshlrev_b32 {V(u[7])}, 4, {V(u[3])}")
    a(f"buffer_load_dwordx3 {V(vSt,3)}, {V(u[7])}, s[{rW}:{rW+3}], s{sT1} offen")
    if OPT["touch"]:
        a(f"s_and_b32 s{sT0}, s2, 7")
        a(f"s_lshl_b32 s{sT0}, s{sT0}, 7")
        a(f"s_add_u32 s{sT0}, s{sT0}, {WS_CNT+80*128}")
        a(f"s_cmp_lg_u32 s{sWave}, 0")
        a("s_cbranch_scc1 L2_m_tgo")
        a(f"v_mov_b32 {V(u[1])}, 0")
        a(f"s_mov_b32 s{sT2}, {SPIN}")
        a("s_mov_b64 exec, 1")
        a("L2_m_tpoll:")
        a("s_sleep 12")
        a(f"buffer_load_dword {V(u[2])}, {V(u[1])}, s[{rW}:{rW+3}], s{sT0} offen sc1")
        a(f"s_sub_u32 s{sT2}, s{sT2}, 1")
        a("s_cbranch_scc1 L2_m_tgo")
        a("s_waitcnt vmcnt(0)")
        a(f"v_cmp_gt_u32 vcc, 32, {V(u[2])}")
        a("s_cbranch_vccnz L2_m_tpoll")
        a("L2_m_tgo:")
        a("s_mov_b64 exec, -1")
        a("s_barrier")
        a.stamp(13)
    a(f"v_lshrrev_b32 {V(u[1])}, 1, {V(vL)}")
    a(f"v_mul_u32_u24 {V(u[1])}, {WG_ROWB}, {V(u[1])}")
    a(f"v_and_b32 {V(u[2])}, 1, {V(vL)}")
    a(f"v_lshl_add_u32 {V(u[1])}, {V(u[2])}, 4, {V(u[1])}")
    a(f"s_mul_i32 s{sT0}, s{sWave}, {160*WG_ROWB}")
    a(f"s_lshl_b32 s{sT1}, s{sWi}, 5")
    a(f"s_add_u32 s{sT0}, s{sT0}, s{sT1}")
    a(f"s_mul_i32 s{sT2}, s{sWave}, 5120")
    a(f"v_lshlrev_b32 {V(u[2])}, 4, {V(vL)}")
    for i in range(5):
        a(f"s_add_u32 m0, s{sT2}, {1024*i}")
        a(f"s_add_u32 s{sT1}, s{sT0}, {32*i*WG_ROWB}")
        if OPT["thr"]: a(f"s_waitcnt vmcnt({OPT['thr']-1})")
        a(f"buffer_load_dwordx4 {V(u[1])}, s[{rG}:{rG+3}], s{sT1} offen lds")
        a(f"s_add_u32 m0, s{sT2}, {20480+1024*i}")
        if OPT["thr"]: a(f"s_waitcnt vmcnt({OPT['thr']-1})")
        else: a("s_nop 0")
        a(f"buffer_load_dwordx4 {V(u[1])}, s[{rU}:{rU+3}], s{sT1} offen lds")
    a(f"s_mul_i32 s{sT0}, s{sWi}, 20480")
    a(f"s_add_u32 s{sT0}, s{sT0}, s{sT2}")
    a(f"s_add_u32 m0, s{sT2}, 40960")
    a(f"s_add_u32 s{sT1}, s{sT0}, 4096")
    for i in range(4):
        a(f"buffer_load_dwordx4 {V(u[2])}, s[{rD}:{rD+3}], s{sT0} offen offset:{1024*i} lds")
    a(f"s_add_u32 m0, s{sT2}, {40960+4096}")
    a("s_nop 0")
    a(f"buffer_load_dwordx4 {V(u[2])}, s[{rD}:{rD+3}], s{sT1} offen lds")
    a(f"v_bfe_u32 {V(u[5])}, {V(vL)}, 2, 2")
    a(f"v_lshl_add_u32 {V(u[7])}, {V(u[6])}, 3, {V(u[5])}")
    a(f"v_lshlrev_b32 {V(u[7])}, 5, {V(u[7])}")
    a(f"v_and_b32 {V(u[0])}, 3, {V(vL)}")
    a(f"v_lshl_add_u32 {V(u[7])}, {V(u[0])}, 3, {V(u[7])}")
    a(f"s_mul_i32 s{sT0}, s{sWave}, 5120")
    a(f"v_add_u32 {V(u[7])}, s{sT0}, {V(u[7])}")
    a.stamp(4)
    a("s_waitcnt vmcnt(5)")
    if OPT["mprio1"]: a(f"s_setprio {OPT['mprio1']}")
    for s in range(5):
        for mtx in range(2):
            for tt in range(2):
                a(f"ds_read_b64_tr_b16 {V(wf+8*s+4*mtx+2*tt,2)}, {V(u[7])} offset:{20480*mtx+1024*s+128*tt}")
    a("s_waitcnt lgkmcnt(0)")
    a("s_nop 1")
    for s in range(5):
        cg = "0" if s == 0 else V(G, 4)
        cu = "0" if s == 0 else V(U, 4)
        a(f"v_mfma_f32_16x16x32_bf16 {V(G,4)}, {V(wf+8*s,4)}, {V(xb+4*s,4)}, {cg}")
        a(f"v_mfma_f32_16x16x32_bf16 {V(U,4)}, {V(wf+8*s+4,4)}, {V(xb+4*s,4)}, {cu}")
    PART = 61440
    a(f"s_lshl_b32 s{sT0}, s{sWave}, 11")
    a(f"s_add_u32 s{sT0}, s{sT0}, {PART}")
    a(f"v_add_u32 {V(u[1])}, s{sT0}, {V(u[2])}")
    a(f"v_add_u32 {V(u[2])}, {PART}, {V(u[2])}")
    a(f"v_lshl_add_u32 {V(u[7])}, {V(u[6])}, 2, {V(u[5])}")
    a(f"v_mul_u32_u24 {V(u[7])}, {ROWB}, {V(u[7])}")
    a(f"v_lshl_add_u32 {V(u[7])}, {V(u[0])}, 3, {V(u[7])}")
    a(f"s_mul_i32 s{sT0}, s{sWave}, 320")
    a(f"s_add_u32 s{sT0}, s{sT0}, 40960")
    a(f"v_add_u32 {V(u[7])}, s{sT0}, {V(u[7])}")
    a("s_nop 4")
    a(f"ds_write_b128 {V(u[1])}, {V(G,4)}")
    a(f"ds_write_b128 {V(u[1])}, {V(U,4)} offset:1024")
    a("s_waitcnt vmcnt(0) lgkmcnt(0)")
    a("s_barrier")
    a.stamp(5)
    HB = PART + 8192
    a(f"s_lshl_b32 s{sT0}, s{sWave}, 2")
    a(f"v_add_u32 {V(u[1])}, s{sT0}, {V(u[2])}")
    for w in range(4):
        a(f"ds_read2st64_b32 {V(wf+2*w,2)}, {V(u[1])} offset0:{8*w} offset1:{8*w+4}")
    for T in range(10):
        a(f"ds_read_b64_tr_b16 {V(xb+2*T,2)}, {V(u[7])} offset:{32*T}")
    a(f"s_lshl_b32 s{sT0}, s{sWave}, 1")
    a(f"s_add_u32 s{sT0}, s{sT0}, {HB}")
    a(f"v_lshl_add_u32 {V(u[1])}, {V(vL)}, 3, s{sT0}")
    a("s_waitcnt lgkmcnt(10)")
    for m_ in range(2):
        a(f"v_add_f32 {V(wf+m_)}, {V(wf+m_)}, {V(wf+2+m_)}")
        a(f"v_add_f32 {V(wf+4+m_)}, {V(wf+4+m_)}, {V(wf+6+m_)}")
    for m_ in range(2):
        a(f"v_add_f32 {V(G+m_)}, {V(wf+m_)}, {V(wf+4+m_)}")
    a("s_nop 1")
    for m_ in range(2):
        a(f"v_mov_b32_dpp {V(wf+m_)}, {V(G+m_)} row_newbcast:8 row_mask:0xf bank_mask:0xf")
    for m_ in range(2):
        a(f"v_fma_f32 {V(G+m_)}, -{V(vSt)}, {V(wf+m_)}, {V(G+m_)}")
    for m_ in range(2):
        a(f"v_mul_f32 {V(G+m_)}, {V(vSt+1)}, {V(G+m_)}")
    a(f"v_cvt_pk_bf16_f32 {V(G+1)}, {V(G)}, {V(G+1)}")
    a(f"v_lshlrev_b32 {V(G)}, 16, {V(G+1)}")
    a(f"v_and_b32 {V(G+1)}, 0xffff0000, {V(G+1)}")
    a(f"v_mul_f32 {V(wf)}, {hex(f32bits(-1.4426950408889634))}, {V(G)}")
    a(f"v_exp_f32 {V(wf)}, {V(wf)}")
    a("s_nop 0")
    a(f"v_add_f32 {V(wf)}, 1.0, {V(wf)}")
    a(f"v_rcp_f32 {V(wf)}, {V(wf)}")
    a("s_nop 0")
    a(f"v_mul_f32 {V(G)}, {V(G)}, {V(wf)}")
    bf16_round(a, G, G)
    a(f"v_mul_f32 {V(G)}, {V(G)}, {V(G+1)}")
    a(f"v_cvt_pk_bf16_f32 {V(G)}, {V(G)}, {V(G)}")
    a(f"ds_write_b16 {V(u[1])}, {V(G)}")
    a(f"v_and_b32 {V(u[1])}, 0xfffffff8, {V(u[1])}")
    a("s_waitcnt lgkmcnt(0)")
    a("s_barrier")
    a(f"ds_read_b64 {V(hb,2)}, {V(u[1])}")
    a(f"v_mul_u32_u24 {V(u[1])}, 2560, {V(u[4])}")
    a(f"v_lshl_add_u32 {V(u[1])}, {V(u[6])}, 4, {V(u[1])}")
    a(f"s_mul_i32 s{sT0}, s{sWi}, 20480")
    a(f"s_mul_i32 s{sT1}, s{sWave}, 640")
    a(f"s_add_u32 s{sT0}, s{sT0}, s{sT1}")
    a(f"s_add_u32 s{sT0}, s{sT0}, {WS_YP}")
    a("s_waitcnt lgkmcnt(0)")
    for T in range(10):
        a(f"v_mfma_f32_16x16x16_bf16 {V(wf+4*T,4)}, {V(xb+2*T,2)}, {V(hb,2)}, 0")
    a("s_nop 4")
    a(f"s_mov_b32 exec_lo, 0x00ff00ff")
    a(f"s_mov_b32 exec_hi, 0x00ff00ff")
    for T in range(10):
        a(f"buffer_store_dwordx4 {V(wf+4*T,4)}, {V(u[1])}, s[{rW}:{rW+3}], s{sT0} offen offset:{64*T} {ST}")
    a.stamp(7)
    if OPT["mprio1"]: a("s_setprio 0")
    a("s_mov_b64 exec, 0xff")
    a(f"v_lshlrev_b32 {V(u[0])}, 7, {V(vL)}")
    a(f"v_add_u32 {V(u[0])}, {WS_CNT+64*128}, {V(u[0])}")
    a(f"v_mov_b32 {V(u[1])}, 1")
    a("s_waitcnt vmcnt(0)")
    a("s_barrier")
    a(f"s_cmp_lg_u32 s{sWave}, 0")
    a("s_cbranch_scc1 L2_m_noadd")
    a(f"buffer_atomic_add {V(u[1])}, {V(u[0])}, s[{rW}:{rW+3}], 0 offen sc1")
    a("L2_m_noadd:")
    a.stamp(12)
    a(f"s_cmp_ge_u32 s{sWi}, 80")
    a("s_cbranch_scc1 L2_moe_end")
    a(f"s_cmp_eq_u32 s{sWave}, 3")
    a("s_cbranch_scc1 L2_moe_end")
    a(f"s_cmp_lg_u32 s{sWave}, 0")
    a("s_cbranch_scc1 L2_m_go")
    a(f"s_mov_b32 s{sT2}, {SPIN}")
    a(f"s_and_b32 s{sT0}, s{sWi}, 7")
    a(f"s_lshl_b32 s{sT0}, s{sT0}, 7")
    a("s_mov_b64 exec, 1")
    a("L2_m_poll:")
    a("s_sleep 12")
    a(f"buffer_load_dword {V(u[2])}, {V(u[0])}, s[{rW}:{rW+3}], s{sT0} offen sc1")
    a(f"s_sub_u32 s{sT2}, s{sT2}, 1")
    a("s_cbranch_scc1 L2_m_go")
    a("s_waitcnt vmcnt(0)")
    a(f"v_readfirstlane_b32 s{sT1}, {V(u[2])}")
    a(f"s_cmp_lt_u32 s{sT1}, {NW}")
    a("s_cbranch_scc1 L2_m_poll")
    a("L2_m_go:")
    a("s_mov_b64 exec, -1")
    a("s_barrier")
    a.stamp(6)
    if OPT["mprio2"]: a(f"s_setprio {OPT['mprio2']}")
    a(f"s_mul_i32 s{sT0}, s{sWi}, 205")
    a(f"s_lshr_b32 s{sT0}, s{sT0}, 11")
    a(f"s_mul_i32 s{sT1}, s{sT0}, 10")
    a(f"s_sub_u32 s{sT1}, s{sWi}, s{sT1}")
    a(f"s_mov_b32 m0, s{sT0}")
    a(f"s_mul_i32 s{sT0}, s{sT0}, 2560")
    a(f"s_lshl_b32 s{sT1}, s{sT1}, 8")
    a(f"s_add_u32 s{sT0}, s{sT0}, s{sT1}")
    a(f"v_readlane_b32 s{sK}, {V(vR)}, m0")
    a(f"s_mul_i32 s{sT1}, s{sWave}, {36*20480}")
    a(f"s_add_u32 s{sT1}, s{sT1}, s{sT0}")
    a(f"s_add_u32 s{sT1}, s{sT1}, {WS_YP}")
    a(f"v_mul_u32_u24 {V(u[2])}, 20480, {V(u[6])}")
    a(f"v_lshl_add_u32 {V(u[2])}, {V(u[4])}, 4, {V(u[2])}")
    for i in range(9):
        a(f"buffer_load_dwordx4 {V(wf+4*i,4)}, {V(u[2])}, s[{rW}:{rW+3}], s{sT1} offen sc1")
        if i < 8: a(f"s_add_u32 s{sT1}, s{sT1}, {4*20480}")
    a(f"v_lshlrev_b32 {V(u[3])}, 4, {V(vL)}")
    a(f"s_lshl_b32 s{sT1}, s{sWave}, 10")
    a(f"v_add_u32 {V(u[5])}, s{sT1}, {V(u[3])}")
    for i in range(1, 9):
        a(f"s_waitcnt vmcnt({8-i})")
        for r in range(4):
            a(f"v_add_f32 {V(wf+r)}, {V(wf+r)}, {V(wf+4*i+r)}")
    a(f"ds_write_b128 {V(u[5])}, {V(wf,4)}")
    a("s_waitcnt lgkmcnt(0)")
    a("s_barrier")
    a(f"s_cmp_lg_u32 s{sWave}, 0")
    a("s_cbranch_scc1 L2_moe_end")
    a(f"v_lshlrev_b32 {V(u[3])}, 2, {V(vL)}")
    for i in range(6):
        a(f"ds_read2st64_b32 {V(wf+2*i,2)}, {V(u[3])} offset0:{2*i} offset1:{2*i+1}")
    a(f"v_mov_b32 {V(vR)}, s{sK}")
    sigmoid_bf16(a, vR)
    a("s_waitcnt lgkmcnt(0)")
    for i in range(1, 12):
        a(f"v_add_f32 {V(wf)}, {V(wf)}, {V(wf+i)}")
    bf16_round(a, wf, wf)
    a(f"v_mul_f32 {V(wf)}, {V(vR)}, {V(wf)}")
    bf16_round(a, wf, wf)
    a(f"s_add_u32 s{sT0}, s{sT0}, {WS_UPD}")
    a(f"buffer_store_dword {V(wf)}, {V(u[3])}, s[{rW}:{rW+3}], s{sT0} offen sc1")
    a("s_mov_b64 exec, 0xff")
    a("s_waitcnt vmcnt(0)")
    a(f"buffer_atomic_add {V(u[1])}, {V(u[0])}, s[{rW}:{rW+3}], 0 offen offset:1024 sc1")
    a("L2_moe_end:")
    END()
    a("L2_end:")
    a("s_endpgm")
    a("L2_codeend:")
    return name, 128
```

```python
S_TOK = 2048; D = 640; H = 32; DH = 20; F = 1728
ROWB = D * 2
X_BYTES = S_TOK * ROWB
WQKV_ROWB = 3 * D * 2
WQKV_BYTES = D * WQKV_ROWB
WO_BYTES = D * ROWB
WG_ROWB = F * 2
WG_BYTES = D * WG_ROWB
WD_BYTES = F * ROWB
PB = 80 * 512
VG = 352
VH = 4 * VG
KVB = PB + H * VH
BLK = 3 * 512 + VH
WS_KV = 0
KV_BYTES = 64 * KVB
WS_Q = WS_KV + KV_BYTES
Q_BYTES = 64 * PB
WS_O = WS_Q + Q_BYTES
O_BYTES = 64 * PB
WS_STAT = WS_O + O_BYTES
STAT_BYTES = S_TOK * 16
WS_SEL = WS_STAT + STAT_BYTES
SEL_BYTES = 64
MAP = dict(k1=0, k2=1)
NW = 108
WS_CNT = WS_SEL + 256
NCNT = 88
NMOE = 128
WS_UPD = WS_CNT + NCNT * 128
WS_YP = WS_UPD + 8 * D * 4
YP_BYTES = NW * 8 * D * 4
WS_DBG = WS_YP + YP_BYTES
WS_END = WS_DBG + 4 * 262144
QSCALE = DH ** -0.5 * 1.4426950408889634
import struct
def f32bits(x): return struct.unpack("<I", struct.pack("<f", x))[0]
if __name__ == "__main__":
    for k, v in list(globals().items()):
        if k.isupper(): print(k, v, hex(v) if isinstance(v, int) else "")
```

```python
import gen, sys
from asmlib import *
from layout import *
def probe(kA, iA, kB, iB, mult, aggA="min", aggB="max", nwg=200, baseB=0, nB=None):
    a = Asm()
    kernel_header(a, "probe_kernel")
    a("s_cmp_lg_u32 s2, 0"); a("s_cbranch_scc1 LP_end")
    a("s_load_dwordx2 s[4:5], s[0:1], 80")
    a("s_waitcnt lgkmcnt(0)")
    srd(a, 8, 4, WS_END)
    a(f"v_min_u32 v1, {nwg-1}, v0")
    a(f"v_min_u32 v7, {(nB or nwg)-1}, v0")
    a(f"v_add_u32 v7, {baseB}, v7")
    a(f"v_lshlrev_b32 v7, {10 if kB != 1 else 9}, v7")
    a(f"v_lshlrev_b32 v1, {10 if kA != 1 else 9}, v1")
    a(f"s_mov_b32 s12, {WS_DBG + kA*262144 + iA*4}")
    a(f"s_mov_b32 s13, {WS_DBG + kB*262144 + iB*4}")
    a("buffer_load_dword v2, v1, s[8:11], s12 offen")
    a("buffer_load_dword v3, v7, s[8:11], s13 offen")
    a(f"v_mov_b32 v4, {-1 if aggA=='min' else 0}"); a(f"v_mov_b32 v5, {-1 if aggB=='min' else 0}"); a("v_mov_b32 v6, 0")
    a("ds_write_b64 v6, v[4:5]")
    a("s_waitcnt vmcnt(0) lgkmcnt(0)"); a("s_barrier")
    a(f"ds_{aggA}_u32 v6, v2"); a(f"ds_{aggB}_u32 v6, v3 offset:4")
    a("s_waitcnt lgkmcnt(0)"); a("s_barrier")
    a("ds_read_b64 v[4:5], v6"); a("s_waitcnt lgkmcnt(0)")
    a("v_sub_u32 v4, v5, v4"); a("s_nop 1"); a("v_readfirstlane_b32 s14, v4")
    a(f"s_mul_i32 s14, s14, {mult}")
    a("s_min_u32 s14, s14, 20000")
    a("s_memrealtime s[16:17]"); a("s_waitcnt lgkmcnt(0)")
    a("LP_spin:")
    a("s_memrealtime s[18:19]"); a("s_waitcnt lgkmcnt(0)")
    a("s_sub_u32 s18, s18, s16"); a("s_cmp_lt_u32 s18, s14"); a("s_cbranch_scc1 LP_spin")
    a("LP_end:"); a("s_endpgm")
    return a.text()
def variant(name, *args, **kw):
    base = gen.build(extra_launch="; @launch kernel=probe_kernel grid=(1,1,1) block=(256,1,1) lds=64\n", instr=1)
    s = base.replace('.section .rodata,"a"', probe(*args, **kw) + '.section .rodata,"a"') + kernel_desc("probe_kernel", 8)
    open(f"var/{name}.s", "w").write(s)
if __name__ == "__main__":
    import k2
    k2.OPT.update(touch=0, thr=2)
    variant("p_zero", 0, 0, 0, 0, 0)
    variant("p_span", 0, 0, 1, 10, 1)
    variant("p_k2", 1, 0, 1, 10, 1)
    variant("p_loop", 1, 0, 1, 5, 1)
    variant("p_moeend", 1, 0, 1, 10, 1, baseB=256, nB=96)
    variant("p_moeld", 1, 0, 1, 5, 1, baseB=256, nB=96)
```
